```python
import torch

def _softmax(x, axis=-1):
    return torch.softmax(x, dim=axis)
def _gelu(x):
    return torch.nn.functional.gelu(x, approximate="tanh")
def _silu(x):
    return torch.nn.functional.silu(x)
def _sigmoid(x):
    return torch.sigmoid(x)
def _layernorm(x, axis=-1, eps=1e-5):
    m = x.mean(dim=axis, keepdim=True)
    v = x.var(dim=axis, keepdim=True, unbiased=False)
    return (x - m) / torch.sqrt(v + eps)
def _scatter_add(tgt, idx, src, axis=0):
    return tgt.clone().index_add_(axis, idx, src)
def _segment_sum(src, seg, n):
    out = torch.zeros((n,) + src.shape[1:], dtype=src.dtype)
    return out.index_add_(0, seg, src)
def _pad(x, pw):
    flat = tuple(v for pair in reversed(pw) for v in pair)
    return torch.nn.functional.pad(x, flat)

kernel_name = 'parallel_sum__gqa_block_cached__mixer_channel_mlp__decode'

def setup_inputs():

    _w = (lambda a: (lambda t: t.to(torch.bfloat16) if t.is_floating_point() else t)(torch.as_tensor(a)))
    def _A_setup():
        B, Sq, D = 4, 1, 1024
        Hq, Hkv, Sk, Dh = 32, 4, 16384, 128
        assert Hq % Hkv == 0, (Hq, Hkv)
        return {
            "x": _w((lambda *s: torch.randn(*s, dtype=torch.bfloat16) * 0.05)(B, Sq, D)),
            "k_cache": _w((lambda *s: torch.randn(*s, dtype=torch.bfloat16) * 3.2)(B, Hkv, Sk, Dh)),
            "v_cache": _w((lambda *s: torch.randn(*s, dtype=torch.bfloat16) * 0.4)(B, Hkv, Sk, Dh)),
            "wq": _w((lambda *s: torch.randn(*s, dtype=torch.bfloat16) * 3.2)(D, Hq * Dh) * (D ** -0.5)),
            "wo": _w((lambda *s: torch.randn(*s, dtype=torch.bfloat16) * 0.4)(Hq * Dh, D) * ((Hq * Dh) ** -0.5)),
        }
    _A_in = _A_setup()

    def _B_setup():
        B, S, D, F = 4, 1, 1024, 3584
        return {
            "x": _w((lambda *s: torch.randn(*s, dtype=torch.bfloat16) * 0.05)(B, S, D)),
            "w1": _w((lambda *s: torch.randn(*s, dtype=torch.bfloat16) * 3.2)(D, F) * (D ** -0.5)),
            "b1": _w((lambda *s: torch.randn(*s, dtype=torch.bfloat16) * 1.6)(F)),
            "w2": _w((lambda *s: torch.randn(*s, dtype=torch.bfloat16) * 0.1)(F, D) * (F ** -0.5)),
            "b2": _w((lambda *s: torch.randn(*s, dtype=torch.bfloat16) * 0.1)(D)),
        }
    _B_in = _B_setup()

    return {
        "A_x": _A_in["x"],
        "A_k_cache": _A_in["k_cache"],
        "A_v_cache": _A_in["v_cache"],
        "A_wq": _A_in["wq"],
        "A_wo": _A_in["wo"],
        "B_x": _B_in["x"],
        "B_w1": _B_in["w1"],
        "B_b1": _B_in["b1"],
        "B_w2": _B_in["w2"],
        "B_b2": _B_in["b2"],
    }

def reference(A_x, A_k_cache, A_v_cache, A_wq, A_wo, B_x, B_w1, B_b1, B_w2, B_b2):
    def _A_ref(x, k_cache, v_cache, wq, wo):
        B, Sq, D = x.shape
        Hq, Dh = 32, 128
        Hkv = k_cache.shape[1]
        rep = Hq // Hkv
        q = (lambda x, *d: x.permute(*d))((x @ wq).reshape(B, Sq, Hq, Dh), 0, 2, 1, 3)
        k = (lambda x, n, axis: torch.repeat_interleave(x, n, dim=axis))(k_cache, rep, axis=1)
        v = (lambda x, n, axis: torch.repeat_interleave(x, n, dim=axis))(v_cache, rep, axis=1)
        scores = torch.einsum("bhqd,bhkd->bhqk", q, k) * (Dh ** -0.5)
        p = _softmax(scores, axis=-1)
        o = torch.einsum("bhqk,bhkd->bhqd", p, v)
        return (lambda x, *d: x.permute(*d))(o, 0, 2, 1, 3).reshape(B, Sq, Hq * Dh) @ wo

    def _B_ref(x, w1, b1, w2, b2):
        y = _layernorm(x, axis=-1)
        h = _gelu(torch.einsum("bsd,df->bsf", y, w1) + b1)
        return torch.einsum("bsf,fd->bsd", h, w2) + b2

    x = A_x
    xn = _layernorm(x, axis=-1)
    return x + _A_ref(xn, A_k_cache, A_v_cache, A_wq, A_wo) + _B_ref(xn, B_w1, B_b1, B_w2, B_b2)
```

```python
import re

TRANS = ("v_exp_f32", "v_log_f32", "v_rcp_f32", "v_rsq_f32", "v_sqrt_f32", "v_sin_f32", "v_cos_f32")


def _regs(tok):
    tok = tok.strip()
    neg = tok.lstrip("-")
    if neg.startswith("abs(") and neg.endswith(")"):
        neg = neg[4:-1]
    neg = neg.strip("|")
    m = re.fullmatch(r"([vas])(\d+)", neg)
    if m:
        return {(m.group(1), int(m.group(2)))}
    m = re.fullmatch(r"([vas])\[(\d+):(\d+)\]", neg)
    if m:
        return {(m.group(1), i) for i in range(int(m.group(2)), int(m.group(3)) + 1)}
    if neg == "vcc":
        return {("s", "vcc")}
    if neg == "exec":
        return {("s", "exec")}
    if neg == "m0":
        return {("s", "m0")}
    return set()


class Ins:
    def __init__(self, text):
        self.text = text
        t = text.split(";")[0].strip()
        parts = t.split(None, 1)
        self.op = parts[0]
        rest = parts[1] if len(parts) > 1 else ""
        ops = [x.strip() for x in rest.split(",")]
        mods = ""
        if ops and ops[-1]:
            sp = ops[-1].split(None, 1)
            ops[-1] = sp[0]
            mods = sp[1] if len(sp) > 1 else ""
        self.ops = ops
        self.mods = mods
        op = self.op
        R = [_regs(o) for o in ops]
        self.w = set()
        self.r = set()
        self.kind = "other"
        self.states = 1
        U = lambda lst: set().union(*lst) if lst else set()
        if op == "s_nop":
            self.states = int(ops[0], 0) + 1
            self.kind = "salu"
        elif op.startswith("v_mfma"):
            self.kind = "mfma"
            self.w = R[0]
            self.a, self.b, self.c = R[1], R[2], R[3]
            self.r = R[1] | R[2] | R[3]
        elif op.startswith("v_cmp"):
            self.kind = "valu"
            self.w = R[0]
            self.r = U(R[1:])
        elif op.startswith("v_readfirstlane") or op.startswith("v_readlane"):
            self.kind = "valu"
            self.w = R[0]
            self.r = U(R[1:])
        elif op.startswith("v_permlane"):
            self.kind = "valu"
            self.w = R[0] | R[1]
            self.r = R[0] | R[1]
        elif op.startswith("v_"):
            self.kind = "valu"
            self.w = R[0]
            self.r = U(R[1:])
            if "_co_" in op:
                self.w |= R[1]
                self.r = U(R[2:])
            if op.startswith("v_fmac") or op.startswith("v_writelane") or "_dpp" in op and "bound_ctrl" not in mods and False:
                self.r |= R[0]
            if op.startswith("v_cndmask") and len(ops) == 3:
                self.r |= {("s", "vcc")}
        elif op.startswith("buffer_load") or op.startswith("global_load"):
            self.kind = "vmem"
            if re.search(r"\blds\b", mods) or "load_lds" in op:
                self.r = U(R) | {("s", "m0")}
                self.lds = True
            else:
                self.w = R[0]
                self.r = U(R[1:])
        elif op.startswith("buffer_store"):
            self.kind = "vmem"
            self.r = U(R)
            self.data = R[0]
        elif op.startswith("global_store"):
            self.kind = "vmem"
            self.r = U(R)
            self.data = R[1]
        elif op.startswith("buffer_atomic") or op.startswith("global_atomic"):
            self.kind = "vmem"
            self.r = U(R)
            if "sc0" in mods:
                self.w = R[0]
        elif op.startswith("ds_read") or op.startswith("ds_bpermute") or op.startswith("ds_swizzle"):
            self.kind = "ds"
            self.w = R[0]
            self.r = U(R[1:])
        elif op.startswith("ds_"):
            self.kind = "ds"
            self.r = U(R)
        elif op.startswith("s_"):
            self.kind = "salu"
            if not (op.startswith("s_cmp") or op.startswith("s_cbranch") or op in (
                    "s_waitcnt", "s_barrier", "s_branch", "s_endpgm", "s_sleep", "s_setprio", "s_bitcmp1_b32", "s_bitcmp0_b32")):
                self.w = R[0] if R else set()
                self.r = U(R[1:])
            else:
                self.r = U(R)
        self.trans = any(op.startswith(x) for x in TRANS)
        self.dpp = "_dpp" in op
        self.wide_store = hasattr(self, "data") and ("x3" in op or "x4" in op)


def need(prev, cur):
    n = 0
    vw = {x for x in prev.w if x[0] in "va"}
    sw = {x for x in prev.w if x[0] == "s"}
    if prev.kind == "valu":
        if cur.kind == "valu":
            if cur.dpp and (vw & cur.r):
                n = max(n, 2)
            if cur.op.startswith("v_permlane") and (vw & cur.r):
                n = max(n, 2)
            if (cur.op.startswith("v_readfirstlane") or cur.op.startswith("v_readlane")) and (vw & cur.r):
                n = max(n, 1)
            if prev.trans and not cur.trans and (vw & cur.r):
                n = max(n, 1)
            if prev.trans and cur.trans and (vw & cur.r):
                n = max(n, 1)
            if sw & cur.r:
                n = max(n, 4 if cur.op.startswith("v_readlane") or cur.op.startswith("v_writelane") else 2)
            if ("sdwa" in prev.op or "op_sel" in prev.mods) and (vw & (cur.r | cur.w)):
                n = max(n, 1)
        if cur.kind == "mfma" and (vw & cur.r):
            n = max(n, 2)
        if cur.kind == "vmem" and (sw & cur.r):
            n = max(n, 5)
        if cur.kind == "salu" and (sw & cur.r):
            n = max(n, 1)
        if prev.trans and cur.kind in ("vmem", "ds") and (vw & cur.r):
            n = max(n, 1)
    if prev.kind == "mfma":
        passes = 8 if "32x32" in prev.op else 4
        big = {4: 8, 8: 12}[passes]
        if cur.kind == "mfma":
            if prev.w & (cur.a | cur.b):
                n = max(n, big)
            if (prev.w & cur.c) and prev.w != cur.c:
                n = max(n, {4: 6, 8: 10}[passes])
            if (prev.w & cur.w) and not (prev.w == cur.c):
                n = max(n, big)
        elif cur.kind in ("valu", "vmem", "ds"):
            if prev.w & (cur.r | cur.w):
                n = max(n, big)
            if cur.kind == "valu" and (prev.c & cur.w):
                n = max(n, {4: 3, 8: 7}[passes])
    if prev.wide_store:
        if prev.data & cur.w:
            n = max(n, 2)
    if prev.kind == "salu" and ("s", "m0") in prev.w and getattr(cur, "lds", False):
        n = max(n, 1)
    return n


class Asm:
    def __init__(self):
        self.lines = []
        self.hist = []
        self.vm_issued = 0
        self.vm_done = 0
        self.nops = 0

    def raw(self, s):
        self.lines.append(s)

    def comment(self, s):
        self.lines.append("    ; " + s)

    def label(self, name, keep_hist=True):
        self.lines.append(name + ":")
        if not keep_hist:
            self.hist = []

    def __call__(self, text):
        ins = Ins(text)
        dist = 0
        pad = 0
        for p in reversed(self.hist):
            if dist >= 20:
                break
            pad = max(pad, need(p, ins) - dist)
            dist += p.states
        if pad > 0:
            self.nops += pad
            k = pad
            while k > 0:
                c = min(k, 16)
                nop = Ins(f"s_nop {c-1}")
                self.lines.append(f"    s_nop {c-1}")
                self.hist.append(nop)
                k -= c
        self.lines.append("    " + text)
        self.hist.append(ins)
        if len(self.hist) > 64:
            self.hist = self.hist[-40:]
        if ins.kind == "vmem":
            self.vm_issued += 1
            assert self.vm_issued - self.vm_done <= 63, f"vmcnt overflow at: {text}"
            return self.vm_issued - 1
        return None

    def wait_vm(self, tok):
        if tok < self.vm_done:
            return
        n = self.vm_issued - tok - 1
        self(f"s_waitcnt vmcnt({n})")
        self.vm_done = tok + 1

    def room(self, n):
        out = self.vm_issued - self.vm_done
        if out + n > 63:
            k = 63 - n
            self(f"s_waitcnt vmcnt({k})")
            self.vm_done = self.vm_issued - k

    def last(self):
        return self.vm_issued - 1

    def lgkm(self, n=0):
        self(f"s_waitcnt lgkmcnt({n})")

    def text(self):
        return "\n".join(self.lines) + "\n"
```

```python
import sys, struct
sys.path.insert(0, "dev")
from asmlib import Asm

NAME = "parallel_sum__gqa_block_cached__mixer_channel_mlp__decode"
HEADER = open("cdna_kernels/" + NAME + ".s.ref").read().split("; Override launch")[0]


def f32(x):
    return "0x%08x" % struct.unpack("<I", struct.pack("<f", x))[0]


QP, HP, OP, ML, ZP, WS_SIZE = 0x100000, 0x180000, 0x200000, 0x300000, 0x400000, 0x600000
L_WQ, L_W1, L_WO, L_W2 = 0, 32768, 65536, 98304
L_RED = 0
L_XN, L_Y, L_Q, L_MX, L_LS, L_OL, L_HL = 131072, 139264, 147456, 149504, 150016, 150272, 150784
LDS_BYTES = 151552
RED_W, RED_H = 4224, 528

sWAVE = "s3"
pX, pK, pV, pWQ, pWO, pW1, pB1, pW2, pB2, pOUT, pWS = 16, 18, 20, 22, 24, 28, 30, 32, 34, 36, 40
rK, rV, rWQ, rW1, rWO, rW2, rWS = 44, 48, 52, 56, 60, 64, 68
sT0, sT1, sB, sHKV, sS, sKQ, sCG, sRG, sCG4 = ["s%d" % i for i in range(72, 81)]
sSELLO, sSELHI, sSCALE, sLOG2E, sT2 = "s81", "s82", "s83", "s84", "s85"
sM = "s[86:87]"
sCNT, sT3 = "s88", "s89"
STAMPS = [(4, 5), (6, 7), (8, 9), (10, 11), (12, 13), (14, 15), (90, 91), (92, 93), (94, 95), (96, 97), (98, 99), (100, 101)]
vTID, vLANE, vK, vV, vL16, vTAG, vTR, vPUB, vB1, vX, vB2, vMX, vL = ["v%d" % i for i in range(13)]
vA, vB_, vC = "v13", "v14", "v15"
Q0 = 16
D0 = 24
T0 = 56
S0 = 64
V0 = 128


def srd(r):
    return f"s[{r}:{r+3}]"


def sp(r):
    return f"s[{r}:{r+1}]"


def vq(r, n=4):
    return f"v[{r}:{r+n-1}]"


def aq(r, n=4):
    return f"a[{r}:{r+n-1}]"


def gen(nt=" nt", wnt=" nt", stamps=False, limit=1 << 14):
    a = Asm()
    nst = [0]

    def stamp():
        if stamps:
            lo, hi = STAMPS[nst[0]]
            a(f"s_memrealtime s[{lo}:{hi}]")
            nst[0] += 1

    def allreduce(op, v, t, bits=(8, 4, 2, 1), rows=True):
        for b in bits:
            a(f"{op}_dpp {v}, {v}, {v} row_ror:{b} row_mask:0xf bank_mask:0xf")
        if rows:
            a(f"v_mov_b32 {t}, {v}")
            a(f"v_permlane16_swap_b32 {v}, {t}")
            a(f"{op} {v}, {v}, {t}")
            a(f"v_mov_b32 {t}, {v}")
            a(f"v_permlane32_swap_b32 {v}, {t}")
            a(f"{op} {v}, {v}, {t}")

    def rne(dst, src):
        a(f"v_cvt_pk_bf16_f32 {dst}, {src}, {src}")
        a(f"v_lshlrev_b32 {dst}, 16, {dst}")

    def unpack(lo, hi, pk):
        a(f"v_lshlrev_b32 {lo}, 16, {pk}")
        a(f"v_and_b32 {hi}, 0xffff0000, {pk}")

    def check_loop(name, quads, issue, tok):
        tags = []
        for q in quads:
            tags += [f"v{q+1}", f"v{q+3}"]
        a.wait_vm(tok)
        a(f"s_mov_b32 {sCNT}, 0")
        a.label(f"L_chk_{name}")
        mn, mx = vA, vB_
        a(f"v_min3_u32 {mn}, {vTAG}, {tags[0]}, {tags[1]}")
        a(f"v_max3_u32 {mx}, {vTAG}, {tags[0]}, {tags[1]}")
        for i in range(2, len(tags), 2):
            a(f"v_min3_u32 {mn}, {mn}, {tags[i]}, {tags[i+1]}")
            a(f"v_max3_u32 {mx}, {mx}, {tags[i]}, {tags[i+1]}")
        a(f"v_cmp_ne_u32 vcc, {mn}, {mx}")
        a(f"s_cbranch_vccz L_ok_{name}")
        a(f"s_add_u32 {sCNT}, {sCNT}, 1")
        a(f"s_cmp_gt_u32 {sCNT}, {limit}")
        a(f"s_cbranch_scc1 L_ok_{name}")
        sv = (a.vm_issued, a.vm_done)
        a.vm_done = a.vm_issued - 40 if a.vm_issued - a.vm_done > 40 else a.vm_done
        a("s_waitcnt vmcnt(40)")
        issue()
        a("s_waitcnt vmcnt(0)")
        a.vm_issued, a.vm_done = sv
        a(f"s_branch L_chk_{name}")
        a.label(f"L_ok_{name}")

    a.raw(HEADER.rstrip())
    a.raw(f"; @launch grid=(256,1,1) block=(256,1,1) lds={LDS_BYTES}")
    a.raw('.amdgcn_target "amdgcn-amd-amdhsa--gfx950"')
    a.raw(".text")
    a.raw(f".globl {NAME}_kernel")
    a.raw(".p2align 8")
    a.raw(f".type {NAME}_kernel,@function")
    a.raw(f"{NAME}_kernel:")
    a.label("L_start")
    a("s_cmp_ge_u32 s2, 256")
    a("s_cbranch_scc1 L_end")
    a("s_load_dwordx16 s[16:31], s[0:1], 0")
    a("s_load_dwordx8 s[32:39], s[0:1], 64")
    a("s_load_dwordx2 s[40:41], s[0:1], 96")
    stamp()
    a(f"v_lshrrev_b32 {vA}, 6, {vTID}")
    a(f"v_and_b32 {vLANE}, 63, {vTID}")
    a(f"v_readfirstlane_b32 {sWAVE}, {vA}")
    a(f"v_lshlrev_b32 {vL16}, 4, {vLANE}")
    a(f"v_lshl_add_u32 {vV}, {vA}, 11, {vL16}")
    a(f"v_bfe_u32 {vB_}, {vLANE}, 2, 2")
    a(f"v_bfe_u32 {vC}, {vLANE}, 1, 1")
    a(f"v_lshl_add_u32 {vB_}, {vC}, 2, {vB_}")
    a(f"v_lshlrev_b32 {vK}, 8, {vB_}")
    a(f"v_lshl_add_u32 {vK}, {vA}, 11, {vK}")
    a(f"v_lshrrev_b32 {vB_}, 4, {vLANE}")
    a(f"v_lshl_add_u32 {vK}, {vB_}, 5, {vK}")
    a(f"v_and_b32 {vC}, 1, {vLANE}")
    a(f"v_lshl_add_u32 {vK}, {vC}, 4, {vK}")
    a(f"s_and_b32 {sKQ}, s2, 3")
    a(f"s_lshr_b32 {sCG}, s2, 2")
    a(f"s_lshr_b32 {sB}, s2, 6")
    a(f"s_bfe_u32 {sHKV}, s2, 0x20004")
    a(f"s_and_b32 {sS}, s2, 15")
    a(f"s_lshr_b32 {sRG}, s2, 5")
    a(f"s_lshl_b32 {sRG}, {sRG}, 3")
    a(f"s_and_b32 {sT0}, s2, 7")
    a(f"s_add_u32 {sRG}, {sRG}, {sT0}")
    a(f"s_bfe_u32 {sCG4}, s2, 0x20003")
    vW = "v56"; vW1 = "v57"; vPF = "v58"; vZ = "v59"
    a(f"v_lshrrev_b32 {vB_}, 3, {vLANE}")
    a(f"v_lshl_add_u32 {vB_}, {vA}, 6, {vB_}")
    a(f"s_lshl_b32 {sT0}, {sKQ}, 8")
    a(f"v_add_u32 {vB_}, {sT0}, {vB_}")
    a(f"v_and_b32 {vC}, 7, {vLANE}")
    a(f"v_lshlrev_b32 {vC}, 4, {vC}")
    a(f"v_lshl_add_u32 {vW}, {vB_}, 13, {vC}")
    a(f"v_mul_u32_u24 {vW1}, 7168, {vB_}")
    a(f"v_add_u32 {vW1}, {vW1}, {vC}")
    a(f"v_lshlrev_b32 {vPF}, 7, {vTID}")
    a(f"v_min_u32 {vPF}, L_end-L_start, {vPF}")
    a(f"v_mov_b32 {vZ}, 0")
    a(f"s_getpc_b64 s[42:43]")
    a.label("L_pc")
    a(f"s_sub_u32 s42, s42, L_pc-L_start")
    a(f"s_subb_u32 s43, s43, 0")
    a(f"s_lshl_b32 {sT0}, s2, 18")
    a(f"s_lshl_b32 {sT2}, {sCG}, 7")
    a(f"s_lshl_b32 {sT3}, {sWAVE}, 13")
    a(f"s_cmp_lt_u32 s2, 224")
    a(f"s_cselect_b32 s{rW1+2}, 0x700000, 0")
    for r in (rK, rV, rWQ, rW1, rWO, rW2, rWS):
        a(f"s_mov_b32 s{r+3}, 0x20000")
    a(f"s_mov_b32 s{rK+2}, 0x40000")
    a(f"s_mov_b32 s{rV+2}, 0x40000")
    a(f"s_mov_b32 s{rWQ+2}, 0x800000")
    a(f"s_mov_b32 s{rWO+2}, 0x800000")
    a(f"s_mov_b32 s{rW2+2}, 0x700000")
    a(f"s_mov_b32 s{rWS+2}, {WS_SIZE}")
    a.lgkm(0)
    X = S0
    tX0 = a(f"global_load_dwordx4 {vq(X)}, {vV}, {sp(pX)}")
    tX = a(f"global_load_dwordx4 {vq(X+4)}, {vV}, {sp(pX)} offset:1024")
    tE = a(f"global_load_dword {vTAG}, {vZ}, {sp(pWS)}")
    for (r, p) in ((rWQ, pWQ), (rW1, pW1)):
        a(f"s_mov_b32 s{r}, s{p}")
        a(f"s_mov_b32 s{r+1}, s{p+1}")
    for (r, v, stride, lb) in ((rWQ, vW, 8192, L_WQ), (rW1, vW1, 7168, L_W1)):
        for j in range(8):
            a(f"s_add_u32 m0, {sT3}, {lb + j*1024}")
            a(f"s_add_u32 {sT1}, {sT2}, {j*8*stride}")
            tW = a(f"buffer_load_dwordx4 {v}, {srd(r)}, {sT1} offen{wnt} lds")
    a(f"s_add_u32 s{rK}, s{pK}, {sT0}")
    a(f"s_addc_u32 s{rK+1}, s{pK+1}, 0")
    a(f"s_add_u32 s{rV}, s{pV}, {sT0}")
    a(f"s_addc_u32 s{rV+1}, s{pV+1}, 0")

    def loadK(t):
        tok = None
        for u in range(4):
            a(f"s_mov_b32 {sT1}, {t*32768 + u*8192}")
            for j in range(2):
                tok = a(f"buffer_load_dwordx4 {aq(32*t + 8*u + 4*j)}, {vK}, {srd(rK)}, {sT1} offen offset:{j*128}{nt}")
        return tok

    def loadV(t):
        tok = None
        base = V0 + 32 * (t % 4)
        for u in range(4):
            a(f"s_mov_b32 {sT1}, {t*32768 + u*8192}")
            for j in range(2):
                tok = a(f"buffer_load_dwordx4 {vq(base + 8*u + 4*j)}, {vV}, {srd(rV)}, {sT1} offen offset:{j*1024}{nt}")
        return tok

    tK = {}
    tK[0] = loadK(0)
    tPF = a(f"global_load_dword {vZ}, {vPF}, s[42:43]")
    for t in range(1, 5):
        tK[t] = loadK(t)
    for (r, p) in ((rWO, pWO), (rW2, pW2), (rWS, pWS)):
        a(f"s_mov_b32 s{r}, s{p}")
        a(f"s_mov_b32 s{r+1}, s{p+1}")
    a(f"s_mov_b32 {sSELLO}, 0x05040100")
    a(f"s_mov_b32 {sSELHI}, 0x07060302")
    a(f"s_mov_b32 {sSCALE}, {f32(128 ** -0.5)}")
    a(f"s_mov_b32 {sLOG2E}, {f32(1.4426950408889634)}")
    a(f"v_lshrrev_b32 {vA}, 4, {vLANE}")
    a(f"v_bfe_u32 {vB_}, {vLANE}, 2, 2")
    a(f"v_lshl_add_u32 {vB_}, {vA}, 3, {vB_}")
    a(f"v_and_b32 {vC}, 3, {vLANE}")
    a(f"v_lshlrev_b32 {vC}, 3, {vC}")
    a(f"v_lshl_add_u32 {vTR}, {vB_}, 7, {vC}")
    a(f"v_and_b32 {vB_}, 15, {vLANE}")
    a(f"v_lshlrev_b32 {vB_}, 17, {vB_}")
    a(f"v_lshl_add_u32 {vPUB}, {vA}, 5, {vB_}")
    for i in range(4):
        a(f"v_mov_b32 v{T0+4+i}, 0")
    a(f"v_add_u32 {vA}, {sT3}, {vL16}")
    a(f"v_add_u32 {vA}, {L_W2 + 7168}, {vA}")
    a(f"ds_write_b128 {vA}, {vq(T0+4)}")

    XF = S0 + 16
    DV = S0 + 32
    a.wait_vm(tX)
    stamp()
    for i in range(8):
        unpack(f"v{XF+2*i}", f"v{XF+2*i+1}", f"v{X+i}")

    def layernorm(ldsoff):
        s_, m_, r_, t_ = "v112", "v113", "v114", "v115"
        for i in range(8):
            a(f"v_add_f32 v{DV+i}, v{XF+2*i}, v{XF+2*i+1}")
        for i in range(4):
            a(f"v_add_f32 v{DV+i}, v{DV+i}, v{DV+4+i}")
        a(f"v_add_f32 v{DV}, v{DV}, v{DV+2}")
        a(f"v_add_f32 v{DV+1}, v{DV+1}, v{DV+3}")
        a(f"v_add_f32 {m_}, v{DV}, v{DV+1}")
        allreduce("v_add_f32", m_, t_)
        a(f"v_mul_f32 {m_}, {f32(1.0/1024)}, {m_}")
        for i in range(16):
            a(f"v_sub_f32 v{DV+i}, v{XF+i}, {m_}")
        a(f"v_mul_f32 {s_}, v{DV}, v{DV}")
        a(f"v_mul_f32 {r_}, v{DV+1}, v{DV+1}")
        for i in range(2, 16, 2):
            a(f"v_fmac_f32 {s_}, v{DV+i}, v{DV+i}")
            a(f"v_fmac_f32 {r_}, v{DV+i+1}, v{DV+i+1}")
        a(f"v_add_f32 {s_}, {s_}, {r_}")
        allreduce("v_add_f32", s_, t_)
        a(f"v_mul_f32 {s_}, {f32(1.0/1024)}, {s_}")
        rne(m_, m_)
        rne(s_, s_)
        a(f"v_add_f32 {s_}, {f32(1e-5)}, {s_}")
        rne(s_, s_)
        a(f"v_sqrt_f32 {s_}, {s_}")
        rne(s_, s_)
        a(f"v_rcp_f32 {r_}, {s_}")
        for i in range(16):
            a(f"v_sub_f32 v{DV+i}, v{XF+i}, {m_}")
        for i in range(8):
            a(f"v_cvt_pk_bf16_f32 v{X+i}, v{DV+2*i}, v{DV+2*i+1}")
        for i in range(8):
            unpack(f"v{DV+2*i}", f"v{DV+2*i+1}", f"v{X+i}")
        for i in range(16):
            a(f"v_mul_f32 v{XF+i}, v{DV+i}, {r_}")
        for i in range(16):
            a(f"v_fma_f32 v{DV+i}, -v{XF+i}, {s_}, v{DV+i}")
        for i in range(16):
            a(f"v_fma_f32 v{XF+i}, v{DV+i}, {r_}, v{XF+i}")
        for i in range(8):
            a(f"v_cvt_pk_bf16_f32 v{X+i}, v{XF+2*i}, v{XF+2*i+1}")
        a(f"v_add_u32 {t_}, {ldsoff}, {vV}")
        a(f"ds_write_b128 {t_}, {vq(X)}")
        a(f"ds_write_b128 {t_}, {vq(X+4)} offset:1024")

    layernorm(L_XN)
    for i in range(8):
        unpack(f"v{XF+2*i}", f"v{XF+2*i+1}", f"v{X+i}")
    a.lgkm(0)
    layernorm(L_Y)
    a.wait_vm(tE)
    a(f"s_mov_b32 {sT0}, 1664525")
    a(f"v_mul_lo_u32 {vTAG}, {vTAG}, {sT0}")
    a(f"v_add_u32 {vTAG}, 1013904223, {vTAG}")
    a.wait_vm(tW)
    a.lgkm(0)
    a("s_barrier")
    stamp()
    vTR1, vBX = "v116", "v117"
    a(f"s_lshl_b32 {sT0}, {sWAVE}, 5")
    a(f"v_add_u32 {vTR1}, {sT0}, {vTR}")
    a(f"v_and_b32 {vA}, 3, {vLANE}")
    a(f"v_lshlrev_b32 {vA}, 11, {vA}")
    a(f"v_lshrrev_b32 {vB_}, 4, {vLANE}")
    a(f"v_lshl_add_u32 {vA}, {vB_}, 4, {vA}")
    a(f"s_lshl_b32 {sT0}, {sKQ}, 9")
    a(f"s_add_u32 {sT0}, {sT0}, {L_XN}")
    a(f"v_add_u32 {vBX}, {sT0}, {vA}")
    AW, BW = V0, V0 + 32
    ACC = [D0, D0 + 4]
    for mi, (lw, lx) in enumerate(((L_WQ, 0), (L_W1, 8192))):
        aw, bw = AW + 64 * mi, BW + 64 * mi
        for ks in range(8):
            for hh in range(2):
                a(f"ds_read_b64_tr_b16 {vq(aw + 4*ks + 2*hh, 2)}, {vTR1} offset:{lw + ks*4096 + hh*512}")
            a(f"ds_read_b128 {vq(bw + 4*ks)}, {vBX} offset:{lx + ks*64}")
            if ks == 3:
                a.lgkm(0)
        a.lgkm(0)
        for ks in range(8):
            c = "0" if ks == 0 else vq(ACC[mi])
            a(f"v_mfma_f32_16x16x32_bf16 {vq(ACC[mi])}, {vq(aw + 4*ks)}, {vq(bw + 4*ks)}, {c}")
    PB = D0 + 8
    for i in range(8):
        a(f"v_mov_b32 v{PB + 2*i + 1}, {vTAG}")
    for mi in range(2):
        for r in range(4):
            a(f"v_mov_b32 v{PB + 8*mi + 2*r}, v{ACC[mi] + r}")
    a(f"s_lshl_b32 {sT0}, {sKQ}, 15")
    a(f"s_lshl_b32 {sT1}, {sCG}, 9")
    a(f"s_add_u32 {sT0}, {sT0}, {sT1}")
    a(f"s_lshl_b32 {sT1}, {sWAVE}, 7")
    a(f"s_add_u32 {sT0}, {sT0}, {sT1}")
    a(f"s_add_u32 {sT1}, {sT0}, {HP}")
    a(f"s_add_u32 {sT0}, {sT0}, {QP}")
    a(f"s_mov_b32 exec_lo, 0x000f000f")
    a(f"s_mov_b32 exec_hi, 0x000f000f")
    a.room(4)
    a(f"buffer_store_dwordx4 {vq(PB)}, {vPUB}, {srd(rWS)}, {sT0} offen sc1")
    a(f"buffer_store_dwordx4 {vq(PB+4)}, {vPUB}, {srd(rWS)}, {sT0} offen offset:16 sc1")
    a(f"buffer_store_dwordx4 {vq(PB+8)}, {vPUB}, {srd(rWS)}, {sT1} offen sc1")
    a(f"buffer_store_dwordx4 {vq(PB+12)}, {vPUB}, {srd(rWS)}, {sT1} offen offset:16 sc1")
    a(f"s_mov_b64 exec, -1")
    stamp()
    vLC = "v118"; vT16 = "v119"
    a(f"v_min_u32 {vLC}, 27, {vLANE}")
    a(f"v_lshlrev_b32 {vA}, 2, {vLC}")
    a(f"s_mul_i32 {sT0}, {sRG}, 112")
    a(f"v_add_u32 {vA}, {sT0}, {vA}")
    a(f"v_and_b32 {vB_}, 7, {vLANE}")
    a(f"v_lshlrev_b32 {vB_}, 2, {vB_}")
    a(f"s_lshl_b32 {sT0}, s2, 5")
    a(f"v_add_u32 {vC}, {sT0}, {vB_}")
    a(f"s_and_b32 {sT0}, {sT0}, 2047")
    a(f"v_add_u32 {vB_}, {sT0}, {vB_}")
    a.room(3)
    a(f"global_load_dword {vB1}, {vA}, {sp(pB1)}")
    a(f"global_load_dword {vX}, {vC}, {sp(pX)}")
    a(f"global_load_dword {vB2}, {vB_}, {sp(pB2)}")
    a(f"v_lshlrev_b32 {vLC}, 4, {vLC}")
    a(f"v_lshlrev_b32 {vT16}, 4, {vTID}")
    GQ, GH = S0, S0 + 32

    def issue_qh():
        a(f"s_lshl_b32 {sT0}, {sB}, 17")
        a(f"s_lshl_b32 {sT1}, {sHKV}, 13")
        a(f"s_add_u32 {sT0}, {sT0}, {sT1}")
        for kq in range(4):
            for hf in range(2):
                a(f"s_add_u32 {sT1}, {sT0}, {QP + kq*32768 + hf*4096}")
                a(f"buffer_load_dwordx4 {vq(GQ + 8*kq + 4*hf)}, {vT16}, {srd(rWS)}, {sT1} offen sc1")
        a(f"s_lshl_b32 {sT0}, {sWAVE}, 17")
        a(f"s_mul_i32 {sT1}, {sRG}, 448")
        a(f"s_add_u32 {sT0}, {sT0}, {sT1}")
        tok = None
        for kq in range(4):
            a(f"s_add_u32 {sT1}, {sT0}, {HP + kq*32768}")
            tok = a(f"buffer_load_dwordx4 {vq(GH + 4*kq)}, {vLC}, {srd(rWS)}, {sT1} offen sc1")
        return tok

    a.room(12)
    tG = issue_qh()
    tV = {}
    for t in range(5, 8):
        a.room(8)
        tK[t] = loadK(t)
    for t in range(4):
        a.room(8)
        tV[t] = loadV(t)
    stamp()
    check_loop("qh", [GQ + 4*i for i in range(8)] + [GH + 4*i for i in range(4)], issue_qh, tG)
    stamp()
    for hf in range(2):
        for c in (0, 2):
            r = GQ + 4*hf + c
            a(f"v_add_f32 v{r}, v{r}, v{r+8}")
            a(f"v_add_f32 v{r+16}, v{r+16}, v{r+24}")
        for c in (0, 2):
            r = GQ + 4*hf + c
            a(f"v_add_f32 v{r}, v{r}, v{r+16}")
        a(f"v_cvt_pk_bf16_f32 v{GQ+4*hf}, v{GQ+4*hf}, v{GQ+4*hf+2}")
    a(f"v_lshlrev_b32 {vA}, 2, {vTID}")
    a(f"v_add_u32 {vA}, {L_Q}, {vA}")
    a(f"ds_write_b32 {vA}, v{GQ}")
    a(f"ds_write_b32 {vA}, v{GQ+4} offset:1024")
    for c in (0, 2):
        r = GH + c
        a(f"v_add_f32 v{r}, v{r}, v{r+4}")
        a(f"v_add_f32 v{r+8}, v{r+8}, v{r+12}")
    for c in (0, 2):
        r = GH + c
        a(f"v_add_f32 v{r}, v{r}, v{r+8}")
    u0, u1, b0, b1_, t0, t1 = [f"v{GH+i}" for i in (4, 5, 6, 7, 8, 9)]
    a(f"v_cvt_pk_bf16_f32 v{GH}, v{GH}, v{GH+2}")
    unpack(u0, u1, f"v{GH}")
    unpack(b0, b1_, vB1)
    a(f"v_add_f32 {u0}, {u0}, {b0}")
    a(f"v_add_f32 {u1}, {u1}, {b1_}")
    a(f"v_cvt_pk_bf16_f32 v{GH}, {u0}, {u1}")
    unpack(u0, u1, f"v{GH}")
    c1 = -2.0 * 0.7978845608028654 * 1.4426950408889634
    c2 = c1 * 0.044715
    a(f"v_mov_b32 {b0}, {f32(c1)}")
    a(f"s_mov_b32 {sT0}, {f32(c2)}")
    for (u, t) in ((u0, t0), (u1, t1)):
        a(f"v_mul_f32 {t}, {u}, {u}")
    for (u, t) in ((u0, t0), (u1, t1)):
        a(f"v_fma_f32 {t}, {t}, {sT0}, {b0}")
    for (u, t) in ((u0, t0), (u1, t1)):
        a(f"v_mul_f32 {t}, {u}, {t}")
    for (u, t) in ((u0, t0), (u1, t1)):
        a(f"v_exp_f32 {t}, {t}")
    for (u, t) in ((u0, t0), (u1, t1)):
        a(f"v_add_f32 {t}, 1.0, {t}")
    for (u, t) in ((u0, t0), (u1, t1)):
        a(f"v_rcp_f32 {t}, {t}")
    for (u, t) in ((u0, t0), (u1, t1)):
        a(f"v_mul_f32 {t}, {u}, {t}")
    a(f"v_cvt_pk_bf16_f32 {t0}, {t0}, {t1}")
    a(f"v_cmp_gt_u32 vcc, 28, {vLANE}")
    a(f"v_lshlrev_b32 {vB_}, 2, {vLANE}")
    a(f"s_lshl_b32 {sT0}, {sWAVE}, 7")
    a(f"s_add_u32 {sT0}, {sT0}, {L_HL}")
    a(f"v_add_u32 {vB_}, {sT0}, {vB_}")
    a(f"v_cndmask_b32 {t0}, 0, {t0}, vcc")
    a(f"s_mov_b32 exec_hi, 0")
    a(f"ds_write_b32 {vB_}, {t0}")
    a(f"s_mov_b64 exec, -1")
    a.lgkm(0)
    a("s_barrier")
    a(f"v_and_b32 {vA}, 7, {vLANE}")
    a(f"v_lshlrev_b32 {vA}, 8, {vA}")
    a(f"v_lshrrev_b32 {vB_}, 4, {vLANE}")
    a(f"v_lshl_add_u32 {vA}, {vB_}, 5, {vA}")
    a(f"v_bfe_u32 {vB_}, {vLANE}, 3, 1")
    a(f"v_lshl_add_u32 {vA}, {vB_}, 4, {vA}")
    a(f"v_add_u32 {vA}, {L_Q}, {vA}")
    a(f"ds_read_b128 {vq(Q0)}, {vA}")
    a(f"ds_read_b128 {vq(Q0+4)}, {vA} offset:128")
    a(f"v_mov_b32 {vMX}, 0xff800000")
    a.lgkm(0)

    def qk_mfma(t):
        d = D0 + 16 * (t & 1)
        a.wait_vm(tK[t])
        for j in range(2):
            for u in range(4):
                c = "0" if j == 0 else vq(d + 4*u)
                a(f"v_mfma_f32_16x16x32_bf16 {vq(d + 4*u)}, {aq(32*t + 8*u + 4*j)}, {vq(Q0 + 4*j)}, {c}")

    def qk_post(t):
        d = D0 + 16 * (t & 1)
        s = S0 + 8 * t
        for u in range(4):
            for tt in range(2):
                a(f"v_add_f32_dpp v{s + 2*u + tt}, v{d + 4*u + 2*tt + 1}, v{d + 4*u + 2*tt} row_ror:8 row_mask:0xf bank_mask:0xf")
        for u in range(4):
            a(f"v_cvt_pk_bf16_f32 v{T0+u}, v{s+2*u}, v{s+2*u+1}")
        for u in range(4):
            unpack(f"v{s+2*u}", f"v{s+2*u+1}", f"v{T0+u}")
        for i in range(8):
            a(f"v_mul_f32 v{s+i}, {sSCALE}, v{s+i}")
        for u in range(4):
            a(f"v_cvt_pk_bf16_f32 v{T0+u}, v{s+2*u}, v{s+2*u+1}")
        for u in range(4):
            unpack(f"v{s+2*u}", f"v{s+2*u+1}", f"v{T0+u}")
        for u in range(4):
            a(f"v_max3_f32 {vMX}, {vMX}, v{s+2*u}, v{s+2*u+1}")

    qk_mfma(0)
    for t in range(8):
        if t + 1 < 8:
            qk_mfma(t + 1)
        qk_post(t)
    stamp()
    vMA = f"v{T0+4}"
    a(f"v_and_b32 {vA}, 7, {vLANE}")
    a(f"v_lshlrev_b32 {vA}, 6, {vA}")
    a(f"v_add_u32 {vA}, {L_MX}, {vA}")
    a(f"v_lshrrev_b32 {vB_}, 4, {vLANE}")
    a(f"v_lshl_add_u32 {vB_}, {vB_}, 2, {vA}")
    a(f"s_lshl_b32 {sT0}, {sWAVE}, 4")
    a(f"v_add_u32 {vB_}, {sT0}, {vB_}")
    a(f"s_mov_b32 exec_lo, 0x00ff00ff")
    a(f"s_mov_b32 exec_hi, 0x00ff00ff")
    a(f"ds_write_b32 {vB_}, {vMX}")
    a(f"s_mov_b64 exec, -1")
    a.lgkm(0)
    a("s_barrier")
    for i in range(4):
        a(f"ds_read_b128 {vq(D0 + 4*i)}, {vA} offset:{16*i}")
    a.lgkm(0)
    a(f"v_max3_f32 {vMX}, v{D0}, v{D0+1}, v{D0+2}")
    a(f"v_max3_f32 {vMA}, v{D0+3}, v{D0+4}, v{D0+5}")
    a(f"v_max3_f32 {vMX}, {vMX}, v{D0+6}, v{D0+7}")
    a(f"v_max3_f32 {vMA}, {vMA}, v{D0+8}, v{D0+9}")
    a(f"v_max3_f32 {vMX}, {vMX}, v{D0+10}, v{D0+11}")
    a(f"v_max3_f32 {vMA}, {vMA}, v{D0+12}, v{D0+13}")
    a(f"v_max3_f32 {vMX}, {vMX}, v{D0+14}, v{D0+15}")
    a(f"v_max_f32 {vMX}, {vMX}, {vMA}")
    vNM = f"v{T0+5}"; vL2 = f"v{T0+6}"
    a(f"v_mul_f32 {vNM}, {sLOG2E}, {vMX}")
    a(f"v_mov_b32 {vL}, 0")
    a(f"v_mov_b32 {vL2}, 0")
    for t in range(8):
        s = S0 + 8 * t
        for i in range(8):
            a(f"v_fma_f32 v{s+i}, v{s+i}, {sLOG2E}, -{vNM}")
        for i in range(8):
            a(f"v_exp_f32 v{s+i}, v{s+i}")
        for u in range(4):
            a(f"v_add_f32 {vL}, {vL}, v{s+2*u}")
            a(f"v_add_f32 {vL2}, {vL2}, v{s+2*u+1}")
        for u in range(4):
            a(f"v_cvt_pk_bf16_f32 v{s+u}, v{s+2*u}, v{s+2*u+1}")
    a(f"v_add_f32 {vL}, {vL}, {vL2}")
    allreduce("v_add_f32", vL, vL2, bits=())
    a(f"v_lshlrev_b32 {vA}, 4, {vLANE}")
    a(f"v_add_u32 {vA}, {L_LS}, {vA}")
    a(f"s_lshl_b32 {sT0}, {sWAVE}, 2")
    a(f"v_add_u32 {vB_}, {sT0}, {vA}")
    a(f"s_mov_b64 exec, 0xff")
    a(f"ds_write_b32 {vB_}, {vL}")
    a(f"s_mov_b64 exec, -1")
    a.lgkm(0)
    a("s_barrier")
    a(f"s_mov_b64 exec, 0xff")
    a(f"ds_read_b128 {vq(D0)}, {vA}")
    a(f"s_lshl_b32 {sT0}, {sHKV}, 13")
    a(f"s_lshl_b32 {sT1}, {sB}, 8")
    a(f"s_add_u32 {sT0}, {sT0}, {sT1}")
    a(f"s_lshl_b32 {sT1}, {sS}, 4")
    a(f"s_add_u32 {sT0}, {sT0}, {sT1}")
    a(f"s_add_u32 {sT0}, {sT0}, {ML}")
    a(f"v_lshlrev_b32 {vB_}, 10, {vLANE}")
    a(f"v_mov_b32 v{D0+4}, {vMX}")
    a(f"v_mov_b32 v{D0+5}, {vTAG}")
    a(f"v_mov_b32 v{D0+7}, {vTAG}")
    a.lgkm(0)
    a(f"v_add_f32 v{D0}, v{D0}, v{D0+1}")
    a(f"v_add_f32 v{D0+2}, v{D0+2}, v{D0+3}")
    a(f"v_add_f32 v{D0+6}, v{D0}, v{D0+2}")
    a.room(1)
    a(f"buffer_store_dwordx4 {vq(D0+4)}, {vB_}, {srd(rWS)}, {sT0} offen sc1")
    a(f"s_mov_b64 exec, -1")
    stamp()

    def pv(t):
        base = V0 + 32 * (t % 4)
        a.wait_vm(tV[t])
        for e in range(8):
            dd = e >> 1
            sel = sSELHI if e & 1 else sSELLO
            for u in range(4):
                a(f"v_perm_b32 v{D0 + 4*e + u}, v{base + 8*u + 4 + dd}, v{base + 8*u + dd}, {sel}")
            if e >= 1:
                ee = e - 1
                c = "0" if t == 0 else aq(4*ee)
                a(f"v_mfma_f32_16x16x32_bf16 {aq(4*ee)}, {vq(D0 + 4*ee)}, {vq(S0 + 8*t)}, {c}")
        c = "0" if t == 0 else aq(28)
        return f"v_mfma_f32_16x16x32_bf16 {aq(28)}, {vq(D0 + 28)}, {vq(S0 + 8*t)}, {c}"

    for t in range(4):
        last = pv(t)
        tV[t + 4] = loadV(t + 4)
        a(last)
    GM, GO = S0, S0 + 16
    vSQ = f"v{T0}"; vW4 = f"v{T0+1}"; vTR4 = f"v{T0+2}"; vBO = f"v{T0+3}"
    a(f"v_lshrrev_b32 {vSQ}, 4, {vLANE}")
    a(f"v_lshlrev_b32 {vSQ}, 4, {vSQ}")

    def issue_ml():
        a(f"s_lshr_b32 {sT0}, {sRG}, 1")
        a(f"s_lshl_b32 {sT0}, {sT0}, 10")
        a(f"s_lshl_b32 {sT1}, {sWAVE}, 8")
        a(f"s_add_u32 {sT0}, {sT0}, {sT1}")
        a(f"s_add_u32 {sT0}, {sT0}, {ML}")
        tok = None
        for j in range(4):
            tok = a(f"buffer_load_dwordx4 {vq(GM + 4*j)}, {vSQ}, {srd(rWS)}, {sT0} offen offset:{64*j} sc1")
        return tok

    tML = issue_ml()
    a(f"v_lshrrev_b32 {vA}, 3, {vLANE}")
    a(f"v_and_b32 {vB_}, 7, {vLANE}")
    a(f"v_lshlrev_b32 {vB_}, 4, {vB_}")
    a(f"v_lshl_add_u32 {vW4}, {vA}, 11, {vB_}")
    a(f"s_lshl_b32 {sT2}, {sCG4}, 9")
    a(f"s_lshl_b32 {sT1}, {sWAVE}, 7")
    a(f"s_add_u32 {sT2}, {sT2}, {sT1}")
    a(f"s_mul_i32 {sT0}, {sRG}, {56*2048}")
    a(f"s_add_u32 {sT0}, {sT0}, {sT2}")
    for j in range(7):
        a(f"s_add_u32 m0, {sT3}, {L_W2 + j*1024}")
        a(f"s_add_u32 {sT1}, {sT0}, {j*16384}")
        tW2 = a(f"buffer_load_dwordx4 {vW4}, {srd(rW2)}, {sT1} offen{wnt} lds")
    a(f"s_lshl_b32 {sT0}, {sRG}, 17")
    a(f"s_add_u32 {sT0}, {sT0}, {sT2}")
    for j in range(8):
        a(f"s_add_u32 m0, {sT3}, {L_WO + j*1024}")
        a(f"s_add_u32 {sT1}, {sT0}, {j*16384}")
        tWO = a(f"buffer_load_dwordx4 {vW4}, {srd(rWO)}, {sT1} offen{wnt} lds")
    a(f"v_add_u32 {vTR4}, {sT3}, {vTR}")
    a(f"v_add_u32 {vTR4}, {L_WO}, {vTR4}")
    a(f"v_and_b32 {vA}, 3, {vLANE}")
    a(f"v_lshlrev_b32 {vA}, 7, {vA}")
    a(f"v_add_u32 {vBO}, {vA}, {vSQ}")
    a(f"v_add_u32 {vBO}, {L_OL}, {vBO}")
    vRW = f"v{T0+4}"; vRR = f"v{T0+5}"; vOP = f"v{T0+6}"; vOW = f"v{T0+7}"
    a(f"v_and_b32 {vA}, 7, {vLANE}")
    a(f"v_mul_u32_u24 {vRW}, {RED_H}, {vA}")
    a(f"v_lshl_add_u32 {vRW}, {vSQ}, 3, {vRW}")
    a(f"s_mul_i32 {sT0}, {sWAVE}, {RED_W}")
    a(f"v_add_u32 {vRW}, {sT0}, {vRW}")
    a(f"v_lshrrev_b32 {vA}, 5, {vTID}")
    a(f"v_mul_u32_u24 {vRR}, {RED_H}, {vA}")
    a(f"v_and_b32 {vA}, 31, {vTID}")
    a(f"v_lshl_add_u32 {vRR}, {vA}, 4, {vRR}")
    a(f"v_lshrrev_b32 {vA}, 4, {vTID}")
    a(f"v_lshlrev_b32 {vOP}, 14, {vA}")
    a(f"v_and_b32 {vA}, 15, {vTID}")
    a(f"v_lshl_add_u32 {vOP}, {vA}, 4, {vOP}")
    a(f"v_bfe_u32 {vA}, {vLANE}, 3, 1")
    a(f"v_lshlrev_b32 {vOW}, 6, {vA}")
    a(f"v_and_b32 {vA}, 7, {vLANE}")
    a(f"v_lshl_add_u32 {vOW}, {vA}, 1, {vOW}")
    a(f"s_lshl_b32 {sT0}, {sWAVE}, 7")
    a(f"s_add_u32 {sT0}, {sT0}, {L_OL}")
    a(f"v_add_u32 {vOW}, {sT0}, {vOW}")
    a(f"v_and_b32 {vA}, 15, {vLANE}")
    a(f"v_lshlrev_b32 {vA}, 19, {vA}")
    a(f"v_lshl_add_u32 {vPUB}, {vSQ}, 1, {vA}")
    for t in range(4, 8):
        a(pv(t))
    stamp()
    a(f"s_lshl_b32 {sT0}, {sHKV}, 18")
    a(f"s_lshl_b32 {sT1}, {sB}, 12")
    a(f"s_add_u32 {sT0}, {sT0}, {sT1}")
    a(f"s_lshl_b32 {sT1}, {sS}, 8")
    a(f"s_add_u32 {sT0}, {sT0}, {sT1}")
    a(f"s_add_u32 {sT0}, {sT0}, {OP}")
    a(f"s_mov_b32 exec_lo, 0x00ff00ff")
    a(f"s_mov_b32 exec_hi, 0x00ff00ff")
    for e in range(8):
        a(f"ds_write_b128 {vRW}, {aq(4*e)} offset:{L_RED + 16*e}")
    a(f"s_mov_b64 exec, -1")
    a(f"v_mov_b32 v{D0+17}, {vTAG}")
    a(f"v_mov_b32 v{D0+19}, {vTAG}")
    a.lgkm(0)
    a("s_barrier")
    for w in range(4):
        a(f"ds_read_b128 {vq(D0 + 4*w)}, {vRR} offset:{L_RED + w*RED_W}")
    a.lgkm(0)
    for r in range(4):
        a(f"v_add_f32 v{D0+r}, v{D0+r}, v{D0+4+r}")
        a(f"v_add_f32 v{D0+8+r}, v{D0+8+r}, v{D0+12+r}")
    for r in range(4):
        a(f"v_add_f32 v{D0+r}, v{D0+r}, v{D0+8+r}")
    a(f"v_cvt_pk_bf16_f32 v{D0+16}, v{D0}, v{D0+1}")
    a(f"v_cvt_pk_bf16_f32 v{D0+18}, v{D0+2}, v{D0+3}")
    a(f"buffer_store_dwordx4 {vq(D0+16)}, {vOP}, {srd(rWS)}, {sT0} offen sc1")

    def issue_op():
        a(f"s_lshl_b32 {sT0}, {sRG}, 14")
        a(f"s_lshl_b32 {sT1}, {sWAVE}, 12")
        a(f"s_add_u32 {sT0}, {sT0}, {sT1}")
        a(f"s_add_u32 {sT0}, {sT0}, {OP}")
        tok = None
        for j in range(4):
            tok = a(f"buffer_load_dwordx4 {vq(GO + 4*j)}, {vL16}, {srd(rWS)}, {sT0} offen offset:{1024*j} sc1")
        return tok

    tOP = issue_op()
    stamp()
    check_loop("ml", [GM + 4*j for j in range(4)], issue_ml, tML)
    W = S0 + 32
    m_, t_, l_ = f"v{W+4}", f"v{W+5}", f"v{W+6}"
    a(f"v_max3_f32 {m_}, v{GM}, v{GM+4}, v{GM+8}")
    a(f"v_max_f32 {m_}, {m_}, v{GM+12}")
    allreduce("v_max_f32", m_, t_, bits=())
    for j in range(4):
        a(f"v_sub_f32 v{W+j}, v{GM+4*j}, {m_}")
    for j in range(4):
        a(f"v_mul_f32 v{W+j}, {sLOG2E}, v{W+j}")
    for j in range(4):
        a(f"v_exp_f32 v{W+j}, v{W+j}")
    a(f"v_mul_f32 {l_}, v{W}, v{GM+2}")
    for j in range(1, 4):
        a(f"v_fmac_f32 {l_}, v{W+j}, v{GM+4*j+2}")
    allreduce("v_add_f32", l_, t_, bits=())
    a(f"v_rcp_f32 {t_}, {l_}")
    a(f"v_fma_f32 {m_}, -{l_}, {t_}, 1.0")
    a(f"v_fma_f32 {t_}, {m_}, {t_}, {t_}")
    for j in range(4):
        a(f"v_mul_f32 v{W+j}, v{W+j}, {t_}")
    AWO, AW2 = 64, 96
    Z = D0
    BH, BO = D0 + 16, D0 + 24
    a.wait_vm(tW2)
    for ks in range(2):
        a(f"ds_read_b128 {vq(BH + 4*ks)}, {vBO} offset:{512 + 64*ks}")
    for ct in range(4):
        for ks in range(2):
            for hh in range(2):
                a(f"ds_read_b64_tr_b16 {aq(AW2 + 8*ct + 4*ks + 2*hh, 2)}, {vTR4} offset:{32768 + ks*4096 + hh*512 + ct*32}")
        if ct == 1:
            a.lgkm(0)
    a.lgkm(0)
    for ks in range(2):
        for ct in range(4):
            c = "0" if ks == 0 else vq(Z + 4*ct)
            a(f"v_mfma_f32_16x16x32_bf16 {vq(Z + 4*ct)}, {aq(AW2 + 8*ct + 4*ks)}, {vq(BH + 4*ks)}, {c}")
    a.wait_vm(tWO)
    for ct in range(4):
        for ks in range(2):
            for hh in range(2):
                a(f"ds_read_b64_tr_b16 {aq(AWO + 8*ct + 4*ks + 2*hh, 2)}, {vTR4} offset:{ks*4096 + hh*512 + ct*32}")
        if ct == 2:
            a.lgkm(0)
    ZS = V0
    for i in range(16):
        a(f"v_mov_b32 v{ZS + 2*i + 1}, {vTAG}")
    a(f"s_lshl_b32 {sT2}, {sCG4}, 17")
    a(f"s_lshl_b32 {sT3}, {sWAVE}, 15")
    a(f"s_add_u32 {sT2}, {sT2}, {sT3}")
    a(f"s_lshl_b32 {sT3}, {sRG}, 7")
    a(f"s_add_u32 {sT2}, {sT2}, {sT3}")
    a(f"s_add_u32 {sT2}, {sT2}, {ZP}")
    check_loop("op", [GO + 4*j for j in range(4)], issue_op, tOP)
    stamp()
    O = V0 + 32
    for j in range(4):
        for h in range(2):
            unpack(f"v{O+4+4*j+2*h}", f"v{O+5+4*j+2*h}", f"v{GO+4*j+2*h}")
    for r in range(4):
        a(f"v_mul_f32 v{O+r}, v{W}, v{O+4+r}")
    for j in range(1, 4):
        for r in range(4):
            a(f"v_fmac_f32 v{O+r}, v{W+j}, v{O+4+4*j+r}")
    for r in range(4):
        a(f"v_mov_b32 v{O+4+r}, v{O+r}")
    for r in range(4):
        a(f"v_permlane16_swap_b32 v{O+r}, v{O+4+r}")
    for r in range(4):
        a(f"v_add_f32 v{O+r}, v{O+r}, v{O+4+r}")
    for r in range(4):
        a(f"v_mov_b32 v{O+4+r}, v{O+r}")
    for r in range(4):
        a(f"v_permlane32_swap_b32 v{O+r}, v{O+4+r}")
    for r in range(4):
        a(f"v_add_f32 v{O+r}, v{O+r}, v{O+4+r}")
    a(f"v_cvt_pk_bf16_f32 v{O}, v{O}, v{O+1}")
    a(f"v_cvt_pk_bf16_f32 v{O+2}, v{O+2}, v{O+3}")
    a(f"s_mov_b64 exec, 0xffff")
    a(f"ds_write_b16 {vOW}, v{O}")
    a(f"ds_write_b16_d16_hi {vOW}, v{O} offset:16")
    a(f"ds_write_b16 {vOW}, v{O+2} offset:32")
    a(f"ds_write_b16_d16_hi {vOW}, v{O+2} offset:48")
    a(f"s_mov_b64 exec, -1")
    a.lgkm(0)
    a("s_barrier")
    for ks in range(2):
        a(f"ds_read_b128 {vq(BO + 4*ks)}, {vBO} offset:{64*ks}")
    a.lgkm(0)
    for ks in range(2):
        for ct in range(4):
            a(f"v_mfma_f32_16x16x32_bf16 {vq(Z + 4*ct)}, {aq(AWO + 8*ct + 4*ks)}, {vq(BO + 4*ks)}, {vq(Z + 4*ct)}")
    a(f"s_mov_b32 exec_lo, 0x000f000f")
    a(f"s_mov_b32 exec_hi, 0x000f000f")
    for ct in range(4):
        for r in range(4):
            a(f"v_mov_b32 v{ZS + 8*ct + 2*r}, v{Z + 4*ct + r}")
        a(f"buffer_store_dwordx4 {vq(ZS + 8*ct)}, {vPUB}, {srd(rWS)}, {sT2} offen sc1")
        a(f"buffer_store_dwordx4 {vq(ZS + 8*ct + 4)}, {vPUB}, {srd(rWS)}, {sT2} offen offset:16 sc1")
        if ct < 3:
            a(f"s_add_u32 {sT2}, {sT2}, 8192")
    a(f"s_mov_b64 exec, -1")
    a(f"s_cmp_lg_u32 {sWAVE}, 0")
    a(f"s_cbranch_scc1 L_end")
    GZ = V0 + 64

    def issue_z():
        a(f"s_lshl_b32 {sT0}, s2, 13")
        a(f"s_add_u32 {sT0}, {sT0}, {ZP}")
        a(f"s_add_u32 {sT1}, {sT0}, 4096")
        tok = None
        for j in range(8):
            so = sT0 if j < 4 else sT1
            tok = a(f"buffer_load_dwordx4 {vq(GZ + 4*j)}, {vL16}, {srd(rWS)}, {so} offen offset:{1024*(j&3)} sc1")
        return tok

    tZ = issue_z()
    x0, x1, b0, b1_ = [f"v{O+i}" for i in range(4)]
    unpack(x0, x1, vX)
    unpack(b0, b1_, vB2)
    a(f"v_add_f32 {x0}, {x0}, {b0}")
    a(f"v_add_f32 {x1}, {x1}, {b1_}")
    a(f"v_and_b32 {vC}, 7, {vLANE}")
    a(f"v_lshlrev_b32 {vC}, 2, {vC}")
    a(f"s_lshl_b32 {sT2}, s2, 5")
    a(f"v_add_u32 {vC}, {sT2}, {vC}")
    check_loop("z", [GZ + 4*j for j in range(8)], issue_z, tZ)
    for c in (0, 2):
        for j in range(4):
            a(f"v_add_f32 v{GZ + 4*j + c}, v{GZ + 4*j + c}, v{GZ + 16 + 4*j + c}")
    for c in (0, 2):
        for j in range(2):
            a(f"v_add_f32 v{GZ + 4*j + c}, v{GZ + 4*j + c}, v{GZ + 8 + 4*j + c}")
    for c in (0, 2):
        a(f"v_add_f32 v{GZ + c}, v{GZ + c}, v{GZ + 4 + c}")
    for c in (0, 2):
        a(f"v_add_f32_dpp v{GZ+c}, v{GZ+c}, v{GZ+c} row_ror:8 row_mask:0xf bank_mask:0xf")
    for sw in ("v_permlane16_swap_b32", "v_permlane32_swap_b32"):
        for c in (0, 2):
            a(f"v_mov_b32 v{GZ+c+1}, v{GZ+c}")
        for c in (0, 2):
            a(f"{sw} v{GZ+c}, v{GZ+c+1}")
        for c in (0, 2):
            a(f"v_add_f32 v{GZ+c}, v{GZ+c}, v{GZ+c+1}")
    a(f"v_add_f32 {x0}, {x0}, v{GZ}")
    a(f"v_add_f32 {x1}, {x1}, v{GZ+2}")
    a(f"v_cvt_pk_bf16_f32 {x0}, {x0}, {x1}")
    a(f"s_mov_b64 exec, 0xff")
    a(f"global_store_dword {vC}, {x0}, {sp(pOUT)}")
    if stamps:
        stamp()
        a.lgkm(0)
        a(f"s_mov_b64 exec, 1")
        a(f"s_mul_i32 {sT0}, s2, {8*len(STAMPS)}")
        a(f"s_add_u32 {sT0}, {sT0}, 0x8000000")
        a(f"v_mov_b32 {vA}, {sT0}")
        for i, (lo, hi) in enumerate(STAMPS):
            a(f"v_mov_b32 v{D0+2*i}, s{lo}")
            a(f"v_mov_b32 v{D0+2*i+1}, s{hi}")
        for i in range(len(STAMPS)):
            a(f"global_store_dwordx2 {vA}, {vq(D0+2*i, 2)}, {sp(pWS)} offset:{8*i}")
    a(f"s_cmp_lg_u32 s2, 0")
    a(f"s_cbranch_scc1 L_end")
    a(f"s_mov_b64 exec, 1")
    a(f"v_mov_b32 {vA}, 0")
    a(f"global_store_dword {vA}, {vTAG}, {sp(pWS)}")
    a.label("L_end")
    a("s_endpgm")
    a.raw('.section .rodata,"a"')
    a.raw(".p2align 6")
    a.raw(f".amdhsa_kernel {NAME}_kernel")
    a.raw("  .amdhsa_next_free_vgpr 512")
    a.raw("  .amdhsa_next_free_sgpr 102")
    a.raw("  .amdhsa_accum_offset 256")
    a.raw("  .amdhsa_group_segment_fixed_size 0")
    a.raw("  .amdhsa_kernarg_size 104")
    a.raw("  .amdhsa_user_sgpr_count 2")
    a.raw("  .amdhsa_user_sgpr_kernarg_segment_ptr 1")
    a.raw("  .amdhsa_system_sgpr_workgroup_id_x 1")
    a.raw("  .amdhsa_float_denorm_mode_32 3")
    a.raw(".end_amdhsa_kernel")
    return a.text()


if __name__ == "__main__":
    import argparse
    ap = argparse.ArgumentParser()
    ap.add_argument("-o", default="cdna_kernels/" + NAME + ".s")
    ap.add_argument("--stamps", action="store_true")
    ap.add_argument("--nt", default=" nt")
    ap.add_argument("--wnt", default=" nt")
    x = ap.parse_args()
    open(x.o, "w").write(gen(nt=x.nt, wnt=x.wnt, stamps=x.stamps))
```

```python
import re

TRANS = ("v_exp_f32", "v_log_f32", "v_rcp_f32", "v_rsq_f32", "v_sqrt_f32", "v_sin_f32", "v_cos_f32")


def _regs(tok):
    tok = tok.strip()
    neg = tok.lstrip("-")
    if neg.startswith("abs(") and neg.endswith(")"):
        neg = neg[4:-1]
    neg = neg.strip("|")
    m = re.fullmatch(r"([vas])(\d+)", neg)
    if m:
        return {(m.group(1), int(m.group(2)))}
    m = re.fullmatch(r"([vas])\[(\d+):(\d+)\]", neg)
    if m:
        return {(m.group(1), i) for i in range(int(m.group(2)), int(m.group(3)) + 1)}
    if neg in ("vcc", "vcc_lo", "vcc_hi"):
        return {("s", "vcc")}
    if neg == "exec":
        return {("s", "exec")}
    if neg == "m0":
        return {("s", "m0")}
    return set()


class Ins:
    def __init__(self, text):
        self.text = text
        t = text.split(";")[0].strip()
        parts = t.split(None, 1)
        self.op = parts[0]
        rest = parts[1] if len(parts) > 1 else ""
        ops = [x.strip() for x in rest.split(",")]
        mods = ""
        if ops and ops[-1]:
            sp = ops[-1].split(None, 1)
            ops[-1] = sp[0]
            mods = sp[1] if len(sp) > 1 else ""
        self.ops = ops
        self.mods = mods
        op = self.op
        R = [_regs(o) for o in ops]
        self.w = set()
        self.r = set()
        self.kind = "other"
        self.states = 1
        U = lambda lst: set().union(*lst) if lst else set()
        if op == "s_nop":
            self.states = int(ops[0], 0) + 1
            self.kind = "salu"
        elif op.startswith("v_mfma"):
            self.kind = "mfma"
            self.w = R[0]
            self.a, self.b, self.c = R[1], R[2], R[3]
            self.r = R[1] | R[2] | R[3]
        elif op.startswith("v_cmp"):
            self.kind = "valu"
            self.w = R[0]
            self.r = U(R[1:])
        elif op.startswith("v_readfirstlane") or op.startswith("v_readlane"):
            self.kind = "valu"
            self.w = R[0]
            self.r = U(R[1:])
        elif op.startswith("v_permlane"):
            self.kind = "valu"
            self.w = R[0] | R[1]
            self.r = R[0] | R[1]
        elif op.startswith("v_"):
            self.kind = "valu"
            self.w = R[0]
            self.r = U(R[1:])
            if "_co_" in op:
                self.w |= R[1]
                self.r = U(R[2:])
            if op.startswith("v_fmac") or op.startswith("v_writelane") or "_dpp" in op and "bound_ctrl" not in mods and False:
                self.r |= R[0]
            if op.startswith("v_cndmask") and len(ops) == 3:
                self.r |= {("s", "vcc")}
        elif op.startswith("buffer_load") or op.startswith("global_load"):
            self.kind = "vmem"
            if re.search(r"\blds\b", mods) or "load_lds" in op:
                self.r = U(R) | {("s", "m0")}
                self.lds = True
            else:
                self.w = R[0]
                self.r = U(R[1:])
        elif op.startswith("buffer_store"):
            self.kind = "vmem"
            self.r = U(R)
            self.data = R[0]
        elif op.startswith("global_store"):
            self.kind = "vmem"
            self.r = U(R)
            self.data = R[1]
        elif op.startswith("buffer_atomic") or op.startswith("global_atomic"):
            self.kind = "vmem"
            self.r = U(R)
            if "sc0" in mods:
                self.w = R[0]
        elif op.startswith("ds_read") or op.startswith("ds_bpermute") or op.startswith("ds_swizzle"):
            self.kind = "ds"
            self.w = R[0]
            self.r = U(R[1:])
        elif op.startswith("ds_"):
            self.kind = "ds"
            self.r = U(R)
        elif op.startswith("s_"):
            self.kind = "salu"
            if not (op.startswith("s_cmp") or op.startswith("s_cbranch") or op in (
                    "s_waitcnt", "s_barrier", "s_branch", "s_endpgm", "s_sleep", "s_setprio", "s_bitcmp1_b32", "s_bitcmp0_b32")):
                self.w = R[0] if R else set()
                self.r = U(R[1:])
            else:
                self.r = U(R)
        self.trans = any(op.startswith(x) for x in TRANS)
        self.dpp = "_dpp" in op
        self.wide_store = hasattr(self, "data") and ("x3" in op or "x4" in op)


def need(prev, cur):
    n = 0
    vw = {x for x in prev.w if x[0] in "va"}
    sw = {x for x in prev.w if x[0] == "s"}
    if prev.kind == "valu":
        if cur.kind == "valu":
            if cur.dpp and (vw & cur.r):
                n = max(n, 2)
            if cur.op.startswith("v_permlane") and (vw & cur.r):
                n = max(n, 2)
            if (cur.op.startswith("v_readfirstlane") or cur.op.startswith("v_readlane")) and (vw & cur.r):
                n = max(n, 1)
            if prev.trans and not cur.trans and (vw & cur.r):
                n = max(n, 1)
            if prev.trans and cur.trans and (vw & cur.r):
                n = max(n, 1)
            if sw & cur.r:
                n = max(n, 4 if cur.op.startswith("v_readlane") or cur.op.startswith("v_writelane") else 2)
            if ("sdwa" in prev.op or "op_sel" in prev.mods) and (vw & (cur.r | cur.w)):
                n = max(n, 1)
        if cur.kind == "mfma" and (vw & cur.r):
            n = max(n, 2)
        if cur.kind == "vmem" and (sw & cur.r):
            n = max(n, 5)
        if cur.kind == "salu" and (sw & cur.r):
            n = max(n, 1)
        if prev.trans and cur.kind in ("vmem", "ds") and (vw & cur.r):
            n = max(n, 1)
    if prev.kind == "mfma":
        passes = 8 if "32x32" in prev.op else 4
        big = {4: 8, 8: 12}[passes]
        if cur.kind == "mfma":
            if prev.w & (cur.a | cur.b):
                n = max(n, big)
            if (prev.w & cur.c) and prev.w != cur.c:
                n = max(n, {4: 6, 8: 10}[passes])
            if (prev.w & cur.w) and not (prev.w == cur.c):
                n = max(n, big)
        elif cur.kind in ("valu", "vmem", "ds"):
            if prev.w & (cur.r | cur.w):
                n = max(n, big)
            if cur.kind == "valu" and (prev.c & cur.w):
                n = max(n, {4: 3, 8: 7}[passes])
    if prev.wide_store:
        if prev.data & cur.w:
            n = max(n, 2)
    if prev.kind == "salu" and ("s", "m0") in prev.w and getattr(cur, "lds", False):
        n = max(n, 1)
    return n


class Asm:
    def __init__(self):
        self.lines = []
        self.hist = []
        self.vm_issued = 0
        self.vm_done = 0
        self.nops = 0
        self.fq = []
        self.fi = 0
        self.flimit = 0
        self.fperiod = 0
        self.fcount = 0
        self.infeed = False

    def raw(self, s):
        self.lines.append(s)

    def comment(self, s):
        self.lines.append("    ; " + s)

    def label(self, name, keep_hist=True):
        self.lines.append(name + ":")
        if not keep_hist:
            self.hist = []

    def __call__(self, text):
        ins = Ins(text)
        dist = 0
        pad = 0
        for p in reversed(self.hist):
            if dist >= 20:
                break
            pad = max(pad, need(p, ins) - dist)
            dist += p.states
        if pad > 0:
            self.nops += pad
            k = pad
            while k > 0:
                c = min(k, 16)
                nop = Ins(f"s_nop {c-1}")
                self.lines.append(f"    s_nop {c-1}")
                self.hist.append(nop)
                k -= c
        self.lines.append("    " + text)
        self.hist.append(ins)
        if len(self.hist) > 64:
            self.hist = self.hist[-40:]
        tok = None
        if ins.kind == "vmem":
            self.vm_issued += 1
            assert self.vm_issued - self.vm_done <= 63, f"vmcnt overflow at: {text}"
            tok = self.vm_issued - 1
        if self.fperiod and not self.infeed:
            self.fcount += 1
            if self.fcount >= self.fperiod and self.fi < self.flimit:
                self.fcount = 0
                self.feed_one()
        return tok

    def feed_one(self):
        self.infeed = True
        self.room(1)
        self.fq[self.fi]()
        self.fi += 1
        self.infeed = False

    def flush(self, upto):
        while self.fi < upto:
            self.feed_one()

    def feed(self, upto, period):
        self.flimit = upto
        self.fperiod = period
        self.fcount = period - 1 if period else 0

    def nofeed(self):
        self.fperiod = 0

    def wait_vm(self, tok):
        if tok < self.vm_done:
            return
        n = self.vm_issued - tok - 1
        self(f"s_waitcnt vmcnt({n})")
        self.vm_done = tok + 1

    def room(self, n):
        out = self.vm_issued - self.vm_done
        if out + n > 63:
            k = 63 - n
            self(f"s_waitcnt vmcnt({k})")
            self.vm_done = self.vm_issued - k

    def last(self):
        return self.vm_issued - 1

    def lgkm(self, n=0):
        self(f"s_waitcnt lgkmcnt({n})")

    def text(self):
        return "\n".join(self.lines) + "\n"
```

```python
import sys, struct
sys.path.insert(0, "dev")
from asmlib import Asm

NAME = "parallel_sum__gqa_block_cached__mixer_channel_mlp__decode"
HEADER = open("cdna_kernels/" + NAME + ".s.ref").read().split("; Override launch")[0]


def f32(x):
    return "0x%08x" % struct.unpack("<I", struct.pack("<f", x))[0]


QP, HP, OP, ML, RG, ZP, WS_SIZE = 0x100000, 0x180000, 0x200000, 0x300000, 0x340000, 0x400000, 0x600000
L_WQ, L_W1, L_WO, L_W2 = 0, 32768, 65536, 98304
L_W1B = L_WO
L_RED = 0
L_XN, L_Y, L_Q, L_F, L_OL, L_HL = 131072, 139264, 147456, 149504, 149760, 150784
LDS_BYTES = 151808
RED_W, RED_H = 4224, 528

sWAVE = "s3"
pX, pK, pV, pWQ, pWO, pW1, pB1, pW2, pB2, pOUT, pWS = 16, 18, 20, 22, 24, 28, 30, 32, 34, 36, 40
sF0, sF1 = "s26", "s27"
pDBG = 38
sCG1, sMLO, sLOC = "s0", "s1", "s80"
sOPO, sOPG = "s42", "s43"
rK, rV, rWQ, rW1, rWO, rW2, rWS = 44, 48, 52, 56, 60, 64, 68
sT0, sT1, sB, sHKV, sS, sKQ, sCG, sRG, sCG4 = ["s%d" % i for i in range(72, 81)]
sSELLO, sSELHI, sSCALE, sLOG2E, sT2 = "s81", "s82", "s83", "s84", "s85"
sMLG, sW4C = "s86", "s87"
sCNT, sT3 = "s88", "s89"
STAMPS = [(4, 5), (6, 7), (8, 9), (10, 11), (12, 13), (14, 15), (90, 91), (92, 93), (94, 95), (96, 97), (98, 99), (100, 101)]
vTID, vLANE, vK, vV, vL16, vTAG, vTR, vPUB, vB1, vW4, vSQ, vMX, vL = ["v%d" % i for i in range(13)]
vA, vB_, vC = "v13", "v14", "v15"
vX, vX1, vB2, vOUT, vTR5, vTR4, vBO, vMR = ["v%d" % i for i in range(16, 24)]
Q0 = 16
D0 = 24
T0 = 56
S0 = 64
V0 = 128


def srd(r):
    return f"s[{r}:{r+3}]"


def sp(r):
    return f"s[{r}:{r+1}]"


def vq(r, n=4):
    return f"v[{r}:{r+n-1}]"


def aq(r, n=4):
    return f"a[{r}:{r+n-1}]"


def gen(nt=" nt", wnt=" nt", stamps=None, limit=1 << 14, xaff=1, fq="", fo=" sc1", wsplit=1, dbg="", masked=2, slp=0, gpos=6,
        per=None, zloc=1, mlpos=6, facpos=5, wo_early=0, wo7=0, w2a=10):
    a = Asm()
    P = dict(ln=22, proj=10, qh=10, qk=40, exp=30, pv=5)
    P.update(per or {})

    def stamp(name):
        if stamps and name in stamps:
            lo, hi = STAMPS[stamps.index(name)]
            a(f"s_memrealtime s[{lo}:{hi}]")

    def rows_reduce(op, regs, tmps):
        for sw in ("v_permlane16_swap_b32", "v_permlane32_swap_b32"):
            for v, t in zip(regs, tmps):
                a(f"v_mov_b32 {t}, {v}")
            for v, t in zip(regs, tmps):
                a(f"{sw} {v}, {t}")
            for v, t in zip(regs, tmps):
                a(f"{op} {v}, {v}, {t}")

    def allreduce(op, v, t):
        for b in (8, 4, 2, 1):
            a(f"{op}_dpp {v}, {v}, {v} row_ror:{b} row_mask:0xf bank_mask:0xf")
        rows_reduce(op, [v], [t])

    def rne(dst, src):
        a(f"v_cvt_pk_bf16_f32 {dst}, {src}, {src}")
        a(f"v_lshlrev_b32 {dst}, 16, {dst}")

    def unpack(lo, hi, pk):
        a(f"v_lshlrev_b32 {lo}, 16, {pk}")
        a(f"v_and_b32 {hi}, 0xffff0000, {pk}")

    def check_loop(name, quads, issue, tok, emb=None):
        tags = []
        for q in quads:
            tags += [f"v{q+1}", f"v{q+3}"]
        a(f"s_mov_b32 {sCNT}, 0")
        a.wait_vm(tok)
        stamp("first_" + name)
        a.label(f"L_chk_{name}")
        mn, mx = vA, vB_
        if emb:
            acc = [mn, mx]
            for qi, q in enumerate(quads):
                for k in range(4):
                    if qi == 0 and k < 2:
                        a(f"v_xor_b32 {acc[k]}, v{q+k}, {emb[k]}")
                    else:
                        a(f"v_bitop3_b32 {acc[k&1]}, {acc[k&1]}, v{q+k}, {emb[k]} bitop3:0xf6")
            a(f"v_or_b32 {mn}, {mn}, {mx}")
            a(f"v_and_b32 {mn}, 0xff, {mn}")
            a(f"v_cmp_ne_u32 vcc, 0, {mn}")
        else:
            a(f"v_min3_u32 {mn}, {vTAG}, {tags[0]}, {tags[1]}")
            a(f"v_max3_u32 {mx}, {vTAG}, {tags[0]}, {tags[1]}")
            for i in range(2, len(tags), 2):
                a(f"v_min3_u32 {mn}, {mn}, {tags[i]}, {tags[i+1]}")
                a(f"v_max3_u32 {mx}, {mx}, {tags[i]}, {tags[i+1]}")
            a(f"v_cmp_ne_u32 vcc, {mn}, {mx}")
        a(f"s_cbranch_vccz L_ok_{name}")
        a(f"s_add_u32 {sCNT}, {sCNT}, 1")
        a(f"s_cmp_gt_u32 {sCNT}, {limit}")
        a(f"s_cbranch_scc1 L_ok_{name}")
        sv = (a.vm_issued, a.vm_done)
        if a.vm_issued - a.vm_done > 40:
            a.vm_done = a.vm_issued - 40
            a("s_waitcnt vmcnt(40)")
        if emb and masked == 2:
            for qi, q in enumerate(quads):
                a(f"v_xor_b32 {mn}, v{q}, {emb[0]}")
                for k in range(1, 4):
                    a(f"v_bitop3_b32 {mn}, {mn}, v{q+k}, {emb[k]} bitop3:0xf6")
                a(f"v_and_b32 {mn}, 0xff, {mn}")
                a(f"v_cmp_ne_u32 vcc, 0, {mn}")
                a(f"s_cbranch_vccz L_skip_{name}{qi}")
                a("s_mov_b64 exec, vcc")
                issue(" sc1", [qi])
                a("s_mov_b64 exec, -1")
                a.label(f"L_skip_{name}{qi}")
        else:
            if masked:
                a("s_mov_b64 exec, vcc")
            issue(" sc1")
            if masked:
                a("s_mov_b64 exec, -1")
        if slp:
            a(f"s_sleep {slp}")
        a("s_waitcnt vmcnt(0)")
        a.vm_issued, a.vm_done = sv
        a(f"s_branch L_chk_{name}")
        a.label(f"L_ok_{name}")
        if stamps and ("cnt_" + name) in stamps:
            lo, hi = STAMPS[stamps.index("cnt_" + name)]
            a(f"s_mov_b32 s{lo}, {sCNT}")
            a(f"s_mov_b32 s{hi}, 0")

    a.raw(HEADER.rstrip())
    a.raw(f"; @launch grid=(256,1,1) block=(256,1,1) lds={LDS_BYTES}")
    a.raw('.amdgcn_target "amdgcn-amd-amdhsa--gfx950"')
    a.raw(".text")
    a.raw(f".globl {NAME}_kernel")
    a.raw(".p2align 8")
    a.raw(f".type {NAME}_kernel,@function")
    a.raw(f"{NAME}_kernel:")
    a("s_cmp_ge_u32 s2, 256")
    a("s_cbranch_scc1 L_end")
    a("s_load_dwordx16 s[16:31], s[0:1], 0")
    a("s_load_dwordx8 s[32:39], s[0:1], 64")
    a("s_load_dwordx2 s[40:41], s[0:1], 96")
    stamp("start")
    vW = "v56"; vW1 = "v57"; vPF = "v58"; vZ = "v59"
    a(f"s_getpc_b64 s[42:43]")
    a.label("L_pc")
    a(f"v_lshlrev_b32 {vPF}, 7, {vTID}")
    a(f"v_min_u32 {vPF}, L_end-L_pc, {vPF}")
    a(f"global_load_dword {vPF}, {vPF}, s[42:43]")
    a(f"v_lshrrev_b32 {vA}, 6, {vTID}")
    a(f"v_and_b32 {vLANE}, 63, {vTID}")
    a(f"v_readfirstlane_b32 {sWAVE}, {vA}")
    a(f"v_lshlrev_b32 {vL16}, 4, {vLANE}")
    a(f"v_lshl_add_u32 {vV}, {vA}, 11, {vL16}")
    a(f"s_bfe_u32 {sKQ}, s2, 0x20001")
    a(f"s_and_b32 {sCG}, s2, 1")
    a(f"s_lshl_b32 {sCG}, {sCG}, 5")
    a(f"s_lshr_b32 {sT0}, s2, 3")
    a(f"s_add_u32 {sCG}, {sCG}, {sT0}")
    a(f"v_lshrrev_b32 {vB_}, 3, {vTID}")
    a(f"v_and_b32 {vC}, 7, {vB_}")
    a(f"v_lshl_add_u32 {vB_}, {vA}, 6, {vC}")
    a(f"s_lshl_b32 {sT0}, {sKQ}, 8")
    a(f"v_add_u32 {vB_}, {sT0}, {vB_}")
    a(f"v_and_b32 {vC}, 0x70, {vL16}")
    a(f"v_lshl_add_u32 {vW}, {vB_}, 13, {vC}")
    a(f"v_mul_u32_u24 {vW1}, 7168, {vB_}")
    a(f"v_add_u32 {vW1}, {vW1}, {vC}")
    a(f"v_mov_b32 {vZ}, 0")
    a(f"s_lshl_b32 {sT2}, {sCG}, 7")
    a(f"s_lshl_b32 {sT3}, {sWAVE}, 13")
    a(f"s_mov_b32 s{rWQ+2}, 0x800000")
    a(f"s_mov_b32 s{rWQ+3}, 0x20000")
    a(f"s_mov_b32 s{rW1+3}, 0x20000")
    a.lgkm(0)
    X = S0
    a(f"global_load_dwordx4 {vq(X)}, {vV}, {sp(pX)}")
    tX = a(f"global_load_dwordx4 {vq(X+4)}, {vV}, {sp(pX)} offset:1024")
    a(f"s_mov_b64 s[{rWQ}:{rWQ+1}], {sp(pWQ)}")
    a(f"s_mov_b64 s[{rW1}:{rW1+1}], {sp(pW1)}")
    for j in range(8):
        a(f"s_add_u32 m0, {sT3}, {L_WQ + j*1024}")
        a(f"s_add_u32 {sT1}, {sT2}, {j*8*8192}")
        a(f"buffer_load_dwordx4 {vW}, {srd(rWQ)}, {sT1} offen{wnt} lds")
    if wsplit == 0:
        a(f"s_mov_b32 {sCG1}, {sCG}")
        a(f"s_cmp_lt_u32 {sCG}, 56")
        a(f"s_cselect_b32 s{rW1+2}, 0x700000, 0")
    else:
        a(f"s_lshr_b32 {sT0}, {sCG}, 3")
        a(f"s_sub_u32 {sCG1}, {sCG}, {sT0}")
        a(f"s_and_b32 {sT0}, {sCG}, 7")
        a(f"s_cmp_gt_u32 {sT0}, 3")
        a(f"s_subb_u32 {sCG1}, {sCG1}, 0")
        if wsplit == 2:
            a(f"s_lshl_b32 {sCG1}, {sCG1}, 1")
            a(f"s_and_b32 {sT1}, s2, 1")
            a(f"s_cselect_b32 {sT0}, 3, {sT0}")
        a(f"s_cmp_lg_u32 {sT0}, 3")
        a(f"s_cselect_b32 s{rW1+2}, 0x700000, 0")
        a(f"s_cselect_b32 {sCG1}, {sCG1}, 60")
    a(f"s_lshl_b32 {sT2}, {sCG1}, 7")
    W1IM = [L_W1, L_W1B] if wsplit == 2 else [L_W1]
    for k, lb in enumerate(W1IM):
        for j in range(8):
            a(f"s_add_u32 m0, {sT3}, {lb + j*1024}")
            a(f"s_add_u32 {sT1}, {sT2}, {j*8*7168 + 128*k}")
            tW = a(f"buffer_load_dwordx4 {vW1}, {srd(rW1)}, {sT1} offen{wnt} lds")
    tE = a(f"global_load_dword {vTAG}, {vZ}, {sp(pWS)}")
    stamp("w_iss")
    a(f"v_bfe_u32 {vB_}, {vLANE}, 2, 2")
    a(f"v_bfe_u32 {vC}, {vLANE}, 1, 1")
    a(f"v_lshl_add_u32 {vB_}, {vC}, 2, {vB_}")
    a(f"v_lshlrev_b32 {vK}, 8, {vB_}")
    a(f"v_lshl_add_u32 {vK}, {vA}, 11, {vK}")
    a(f"v_lshrrev_b32 {vB_}, 4, {vLANE}")
    a(f"v_lshl_add_u32 {vK}, {vB_}, 5, {vK}")
    a(f"v_and_b32 {vC}, 1, {vLANE}")
    a(f"v_lshl_add_u32 {vK}, {vC}, 4, {vK}")
    if xaff:
        a(f"s_and_b32 {sT0}, s2, 7")
        a(f"s_lshl_b32 {sT0}, {sT0}, 1")
        a(f"s_bfe_u32 {sT1}, s2, 0x10003")
        a(f"s_add_u32 {sT0}, {sT0}, {sT1}")
        a(f"s_lshr_b32 {sB}, {sT0}, 2")
        a(f"s_and_b32 {sHKV}, {sT0}, 3")
        a(f"s_lshr_b32 {sS}, s2, 4")
        a(f"s_lshl_b32 {sT0}, {sT0}, 4")
        a(f"s_add_u32 {sT0}, {sT0}, {sS}")
        a(f"s_lshl_b32 {sT0}, {sT0}, 18")
    else:
        a(f"s_lshr_b32 {sB}, s2, 6")
        a(f"s_bfe_u32 {sHKV}, s2, 0x20004")
        a(f"s_and_b32 {sS}, s2, 15")
        a(f"s_lshl_b32 {sT0}, s2, 18")
    a(f"s_add_u32 s{rK}, s{pK}, {sT0}")
    a(f"s_addc_u32 s{rK+1}, s{pK+1}, 0")
    a(f"s_add_u32 s{rV}, s{pV}, {sT0}")
    a(f"s_addc_u32 s{rV+1}, s{pV+1}, 0")
    a(f"s_lshr_b32 {sRG}, s2, 3")
    a(f"s_getreg_b32 {sLOC}, hwreg(HW_REG_XCC_ID, 0, 4)")
    for r in (rK, rV, rWO, rW2, rWS):
        a(f"s_mov_b32 s{r+3}, 0x20000")
    a(f"s_mov_b32 s{rK+2}, 0x40000")
    a(f"s_mov_b32 s{rV+2}, 0x40000")
    a(f"s_mov_b32 s{rWO+2}, 0x800000")
    a(f"s_mov_b32 s{rW2+2}, 0x700000")
    a(f"s_mov_b32 s{rWS+2}, {WS_SIZE}")
    for (r, p) in ((rWO, pWO), (rW2, pW2), (rWS, pWS)):
        a(f"s_mov_b64 s[{r}:{r+1}], {sp(p)}")

    tok = {}
    idx = {}

    def q_tile(kind, t):
        for u in range(4):
            for j in range(2):
                def f(u=u, j=j):
                    if j == 0:
                        a(f"s_mov_b32 {sF0}, {t*32768 + u*8192}")
                    if kind == "K":
                        tok[f"K{t}"] = a(f"buffer_load_dwordx4 {aq(32*t + 8*u + 4*j)}, {vK}, {srd(rK)}, {sF0} offen offset:{j*128}{nt}")
                    else:
                        tok[f"V{t}"] = a(f"buffer_load_dwordx4 {vq(V0 + 32*(t % 4) + 8*u + 4*j)}, {vV}, {srd(rV)}, {sF0} offen offset:{j*1024}{nt}")
                a.fq.append(f)
        idx[f"{kind}{t}"] = len(a.fq)

    def q_w(name, r, lb, rows):
        for j in range(rows // 4):
            def f(j=j):
                if j == 0:
                    a(f"s_lshl_b32 {sF1}, {sRG}, 2")
                    a(f"s_add_u32 {sF1}, {sF1}, {sWAVE}")
                    a(f"s_mul_i32 {sF1}, {sF1}, {rows*2048}")
                    if "rotw" in dbg:
                        a(f"s_lshl_b32 {sF0}, {sRG}, 8")
                        a(f"s_add_u32 {sF0}, {sF0}, {sW4C}")
                        a(f"s_and_b32 {sF0}, {sF0}, 0x7ff")
                        a(f"s_add_u32 {sF1}, {sF1}, {sF0}")
                    else:
                        a(f"s_add_u32 {sF1}, {sF1}, {sW4C}")
                a(f"s_add_u32 m0, {sT3}, {lb + j*1024}")
                a(f"s_add_u32 {sF0}, {sF1}, {j*8192}")
                tok[name] = a(f"buffer_load_dwordx4 {vW4b if j & 2 else vW4}, {srd(r)}, {sF0} offen{wnt} lds")
            a.fq.append(f)
        idx[name] = len(a.fq)

    GM = [S0 + 8*t + 4 for t in range(8)]
    vW4b, vCW0, vCW1, vCWA = vB1, "v60", "v61", "v62"

    GMO = 52

    def issue_ml(fl, js=range(9)):
        t = None
        for j in js:
            if j == 8:
                t = a(f"buffer_load_dwordx4 {vq(GMW)}, {vMW}, {srd(rWS)}, {sMLG} offen{fl}")
                continue
            so = sMLG if j < 4 else sMLO
            t = a(f"buffer_load_dwordx4 {vq(GM[j])}, {vL16}, {srd(rWS)}, {so} offen offset:{1024*(j&3)}{fl}")
        return t

    GMW, vMW = S0, vL

    def q_ml():
        for j in range(9):
            def f(j=j):
                tok["ML"] = issue_ml(" sc1", [j])
            a.fq.append(f)
        a.fq.append(lambda: a(f"buffer_load_dwordx2 v[60:61], {vCWA}, {srd(rWS)}, 0 offen sc1"))
        idx["ML"] = len(a.fq)

    for t in range(8):
        q_tile("K", t)
    for t in range(8):
        if t == mlpos:
            q_ml()
        q_tile("V", t)
    a.fq.append(lambda: a(f"global_load_short_d16_hi {vX}, {vOUT}, {sp(pX)}"))
    a.fq.append(lambda: a(f"global_load_short_d16_hi {vB2}, {vB2}, {sp(pB2)}"))
    q_w("W2", rW2, L_W2, 28)
    q_w("WO", rWO, L_WO, 32)

    def wait(name):
        a.flush(idx[name])
        a.wait_vm(tok[name])

    a(f"s_mov_b32 {sSELLO}, 0x05040100")
    a(f"s_mov_b32 {sSELHI}, 0x07060302")
    a(f"s_mov_b32 {sSCALE}, {f32(128 ** -0.5)}")
    a(f"s_mov_b32 {sLOG2E}, {f32(1.4426950408889634)}")
    a(f"v_lshrrev_b32 {vA}, 4, {vLANE}")
    a(f"v_lshlrev_b32 {vSQ}, 4, {vA}")
    a(f"v_bfe_u32 {vB_}, {vLANE}, 2, 2")
    a(f"v_lshl_add_u32 {vB_}, {vA}, 3, {vB_}")
    a(f"v_and_b32 {vC}, 3, {vLANE}")
    a(f"v_lshlrev_b32 {vC}, 3, {vC}")
    a(f"v_lshl_add_u32 {vTR}, {vB_}, 7, {vC}")
    a(f"v_and_b32 {vB_}, 15, {vLANE}")
    a(f"v_lshlrev_b32 {vB_}, 3, {vB_}")
    a(f"v_lshl_add_u32 {vPUB}, {vA}, 17, {vB_}")
    a(f"v_and_b32 {vB_}, 0xf0, {vL16}")
    a(f"v_lshlrev_b32 {vC}, 5, {vA}")
    a(f"v_xor_b32 {vB_}, {vB_}, {vC}")
    a(f"v_lshl_add_u32 {vW4}, {vA}, 11, {vB_}")
    a(f"s_and_b32 {sW4C}, s2, 7")
    a(f"s_lshl_b32 {sW4C}, {sW4C}, 8")
    for i in range(4):
        a(f"v_mov_b32 v{D0+i}, 0")
    a(f"v_add_u32 {vA}, {sT3}, {vL16}")
    a(f"v_add_u32 {vA}, {L_W2 + 7168}, {vA}")
    a(f"ds_write_b128 {vA}, {vq(D0)}")

    XF = S0 + 16
    DV = S0 + 32
    a.wait_vm(tX)
    stamp("x")

    def layernorm(ldsoff):
        s_, m_, r_, t_ = "v112", "v113", "v114", "v115"
        for i in range(8):
            unpack(f"v{XF+2*i}", f"v{XF+2*i+1}", f"v{X+i}")
        for i in range(8):
            a(f"v_add_f32 v{DV+i}, v{XF+2*i}, v{XF+2*i+1}")
        for i in range(4):
            a(f"v_add_f32 v{DV+i}, v{DV+i}, v{DV+4+i}")
        a(f"v_add_f32 v{DV}, v{DV}, v{DV+2}")
        a(f"v_add_f32 v{DV+1}, v{DV+1}, v{DV+3}")
        a(f"v_add_f32 {m_}, v{DV}, v{DV+1}")
        allreduce("v_add_f32", m_, t_)
        a(f"v_mul_f32 {m_}, {f32(1.0/1024)}, {m_}")
        for i in range(16):
            a(f"v_sub_f32 v{DV+i}, v{XF+i}, {m_}")
        a(f"v_mul_f32 {s_}, v{DV}, v{DV}")
        a(f"v_mul_f32 {r_}, v{DV+1}, v{DV+1}")
        for i in range(2, 16, 2):
            a(f"v_fmac_f32 {s_}, v{DV+i}, v{DV+i}")
            a(f"v_fmac_f32 {r_}, v{DV+i+1}, v{DV+i+1}")
        a(f"v_add_f32 {s_}, {s_}, {r_}")
        allreduce("v_add_f32", s_, t_)
        a(f"v_mul_f32 {s_}, {f32(1.0/1024)}, {s_}")
        rne(m_, m_)
        rne(s_, s_)
        a(f"v_add_f32 {s_}, {f32(1e-5)}, {s_}")
        rne(s_, s_)
        a(f"v_sqrt_f32 {s_}, {s_}")
        rne(s_, s_)
        a(f"v_rcp_f32 {r_}, {s_}")
        for i in range(16):
            a(f"v_sub_f32 v{DV+i}, v{XF+i}, {m_}")
        a.lgkm(0)
        for i in range(8):
            a(f"v_cvt_pk_bf16_f32 v{X+i}, v{DV+2*i}, v{DV+2*i+1}")
        for i in range(8):
            unpack(f"v{DV+2*i}", f"v{DV+2*i+1}", f"v{X+i}")
        for i in range(16):
            a(f"v_mul_f32 v{XF+i}, v{DV+i}, {r_}")
        for i in range(16):
            a(f"v_fma_f32 v{DV+i}, -v{XF+i}, {s_}, v{DV+i}")
        for i in range(16):
            a(f"v_fma_f32 v{XF+i}, v{DV+i}, {r_}, v{XF+i}")
        for i in range(8):
            a(f"v_cvt_pk_bf16_f32 v{X+i}, v{XF+2*i}, v{XF+2*i+1}")
        a(f"v_add_u32 {t_}, {ldsoff}, {vV}")
        a(f"ds_write_b128 {t_}, {vq(X)}")
        a(f"ds_write_b128 {t_}, {vq(X+4)} offset:1024")

    a.feed(idx["K0"], P["ln"])
    layernorm(L_XN)
    a.flush(idx["K0"])
    a.feed(idx["K1"], P["ln"])
    layernorm(L_Y)
    a.nofeed()
    a.flush(idx["K1"])
    stamp("ln")
    a.wait_vm(tE)
    a(f"s_mov_b32 {sT0}, 1664525")
    a(f"v_mul_lo_u32 {vA}, {vTAG}, {sT0}")
    a(f"v_add_u32 {vA}, 1013904223, {vA}")
    a(f"v_lshrrev_b32 {vB_}, 13, {vA}")
    a(f"v_xor_b32 {vA}, {vA}, {vB_}")
    a(f"v_and_b32 {vA}, 0x7e7e7e7e, {vA}")
    a(f"v_or_b32 {vA}, 0x01010101, {vA}")
    a(f"v_add_u32 {vTAG}, {vTAG}, {vA}")
    vTR1, vBX = "v116", "v117"
    a(f"s_lshl_b32 {sT0}, {sWAVE}, 5")
    a(f"v_add_u32 {vTR1}, {sT0}, {vTR}")
    a(f"v_and_b32 {vA}, 3, {vLANE}")
    a(f"v_lshlrev_b32 {vA}, 11, {vA}")
    a(f"v_add_u32 {vA}, {vA}, {vSQ}")
    a(f"s_lshl_b32 {sT0}, {sKQ}, 9")
    a(f"s_add_u32 {sT0}, {sT0}, {L_XN}")
    a(f"v_add_u32 {vBX}, {sT0}, {vA}")
    a(f"v_add_u32 v118, 32768, {vTR1}")
    a.lgkm(0)
    a("s_barrier")
    stamp("w")
    mats = [(vTR1, 0, 0), (vTR1, L_W1, 1)] + ([("v118", L_W1B - 32768, 1)] if wsplit == 2 else [])
    AW = [V0, V0 + 32, V0 + 64]
    BW = [V0 + 96, S0]
    ACC = [D0, D0 + 4, D0 + 8]
    a.feed(idx["K2"], P["proj"])
    for mi, (vt, lw, bx) in enumerate(mats):
        for ks in range(8):
            for hh in range(2):
                a(f"ds_read_b64_tr_b16 {vq(AW[mi] + 4*ks + 2*hh, 2)}, {vt} offset:{lw + ks*4096 + hh*512}")
            if mi < 2:
                a(f"ds_read_b128 {vq(BW[bx] + 4*ks)}, {vBX} offset:{8192*bx + ks*64}")
            if ks == 3:
                a.lgkm(0)
        a.lgkm(0)
        for ks in range(8):
            c = "0" if ks == 0 else vq(ACC[mi])
            a(f"v_mfma_f32_16x16x32_bf16 {vq(ACC[mi])}, {vq(BW[bx] + 4*ks)}, {vq(AW[mi] + 4*ks)}, {c}")
    a.nofeed()
    PB = D0 + 12
    nm = len(mats)
    for mi in range(nm):
        a(f"v_mov_b32 v{PB + 2*mi + 1}, {vTAG}")
    a(f"s_lshl_b32 {sT0}, {sKQ}, 15")
    a(f"s_lshl_b32 {sT1}, {sWAVE}, 7")
    a(f"s_add_u32 {sT0}, {sT0}, {sT1}")
    a(f"s_lshl_b32 {sT1}, {sCG1}, 9")
    a(f"s_add_u32 {sT1}, {sT1}, {sT0}")
    a(f"s_add_u32 {sT1}, {sT1}, {HP}")
    a(f"s_lshl_b32 {sT2}, {sCG}, 9")
    a(f"s_add_u32 {sT0}, {sT0}, {sT2}")
    a(f"s_add_u32 {sT0}, {sT0}, {QP}")
    for mi in range(nm):
        a(f"v_mov_b32 v{PB + 2*mi}, v{ACC[mi]}")
    for r in range(1, 4):
        for mi in range(nm):
            a(f"v_mov_b32_dpp v{PB + 2*mi}, v{ACC[mi] + r} quad_perm:[0,1,2,3] row_mask:{hex(1 << r)} bank_mask:0xf")
    a(f"buffer_store_dwordx2 {vq(PB, 2)}, {vPUB}, {srd(rWS)}, {sT0} offen sc1")
    a(f"buffer_store_dwordx2 {vq(PB+2, 2)}, {vPUB}, {srd(rWS)}, {sT1} offen sc1")
    if nm == 3:
        a(f"buffer_store_dwordx2 {vq(PB+4, 2)}, {vPUB}, {srd(rWS)}, {sT1} offen offset:512 sc1")
    a(f"s_lshl_b32 {sT0}, {sW4C}, 4")
    a(f"s_lshl_b32 {sT1}, {sRG}, 7")
    a(f"s_add_u32 {sT0}, {sT0}, {sT1}")
    a(f"s_add_u32 {sT0}, {sT0}, {RG}")
    a(f"v_mov_b32 v{PB+6}, {sLOC}")
    a(f"v_mov_b32 v{PB+7}, {vTAG}")
    a(f"v_lshlrev_b32 {vA}, 3, {vLANE}")
    a(f"s_mov_b64 exec, 0xffff")
    if "norg" not in dbg:
        a(f"buffer_store_dwordx2 {vq(PB+6, 2)}, {vA}, {srd(rWS)}, {sT0} offen sc1")
    a(f"s_mov_b64 exec, -1")
    stamp("qpub")
    vLC = "v118"; vT16 = "v119"
    a(f"v_min_u32 {vLC}, 55, {vLANE}")
    a(f"v_lshlrev_b32 {vA}, 2, {vLC}")
    a(f"s_mul_i32 {sT0}, {sRG}, 224")
    a(f"v_add_u32 {vA}, {sT0}, {vA}")
    a(f"global_load_dword {vB1}, {vA}, {sp(pB1)}")
    a(f"v_lshlrev_b32 {vLC}, 4, {vLC}")
    a(f"v_lshlrev_b32 {vT16}, 4, {vTID}")
    GQ, GH = S0, S0 + 32

    def issue_qh(fl):
        a(f"s_lshl_b32 {sT0}, {sB}, 17")
        a(f"s_lshl_b32 {sT1}, {sHKV}, 13")
        a(f"s_add_u32 {sT0}, {sT0}, {sT1}")
        for kq in range(4):
            for hf in range(2):
                a(f"s_add_u32 {sT1}, {sT0}, {QP + kq*32768 + hf*4096}")
                a(f"buffer_load_dwordx4 {vq(GQ + 8*kq + 4*hf)}, {vT16}, {srd(rWS)}, {sT1} offen{fl}")
        a(f"s_lshl_b32 {sT0}, {sWAVE}, 17")
        a(f"s_mul_i32 {sT1}, {sRG}, 896")
        a(f"s_add_u32 {sT0}, {sT0}, {sT1}")
        t = None
        for kq in range(4):
            a(f"s_add_u32 {sT1}, {sT0}, {HP + kq*32768}")
            t = a(f"buffer_load_dwordx4 {vq(GH + 4*kq)}, {vLC}, {srd(rWS)}, {sT1} offen{fl}")
        return t

    a.flush(idx[f"K{gpos-1}"])
    a.room(12)
    if "noq" not in dbg:
        tG = issue_qh(fq)
    a.flush(idx[f"K{gpos+1}"] if gpos + 1 < 8 else idx[f"V{gpos+1-8}"])
    stamp("g_iss")
    if "noq" not in dbg:
      check_loop("qh", [GQ + 4*i for i in range(8)] + [GH + 4*i for i in range(4)], issue_qh, tG)
    stamp("g_ok")
    base = a.fi
    a.feed(base + 8, P["qh"])
    for hf in range(2):
        for c in (0, 2):
            r = GQ + 4*hf + c
            a(f"v_add_f32 v{r}, v{r}, v{r+8}")
            a(f"v_add_f32 v{r+16}, v{r+16}, v{r+24}")
        for c in (0, 2):
            r = GQ + 4*hf + c
            a(f"v_add_f32 v{r}, v{r}, v{r+16}")
        a(f"v_cvt_pk_bf16_f32 v{GQ+4*hf}, v{GQ+4*hf}, v{GQ+4*hf+2}")
    a(f"v_lshlrev_b32 {vA}, 2, {vTID}")
    a(f"v_add_u32 {vA}, {L_Q}, {vA}")
    a(f"ds_write_b32 {vA}, v{GQ}")
    a(f"ds_write_b32 {vA}, v{GQ+4} offset:1024")
    for c in (0, 2):
        r = GH + c
        a(f"v_add_f32 v{r}, v{r}, v{r+4}")
        a(f"v_add_f32 v{r+8}, v{r+8}, v{r+12}")
    for c in (0, 2):
        r = GH + c
        a(f"v_add_f32 v{r}, v{r}, v{r+8}")
    u0, u1, b0, b1_, t0, t1 = [f"v{GH+i}" for i in (4, 5, 6, 7, 8, 9)]
    a(f"v_cvt_pk_bf16_f32 v{GH}, v{GH}, v{GH+2}")
    unpack(u0, u1, f"v{GH}")
    unpack(b0, b1_, vB1)
    a(f"v_add_f32 {u0}, {u0}, {b0}")
    a(f"v_add_f32 {u1}, {u1}, {b1_}")
    a(f"v_cvt_pk_bf16_f32 v{GH}, {u0}, {u1}")
    unpack(u0, u1, f"v{GH}")
    c1 = -2.0 * 0.7978845608028654 * 1.4426950408889634
    c2 = c1 * 0.044715
    a(f"v_mov_b32 {b0}, {f32(c1)}")
    a(f"s_mov_b32 {sT0}, {f32(c2)}")
    UT = ((u0, t0), (u1, t1))
    for (u, t) in UT:
        a(f"v_mul_f32 {t}, {u}, {u}")
    for (u, t) in UT:
        a(f"v_fma_f32 {t}, {t}, {sT0}, {b0}")
    for (u, t) in UT:
        a(f"v_mul_f32 {t}, {u}, {t}")
    for (u, t) in UT:
        a(f"v_exp_f32 {t}, {t}")
    for (u, t) in UT:
        a(f"v_add_f32 {t}, 1.0, {t}")
    for (u, t) in UT:
        a(f"v_rcp_f32 {t}, {t}")
    for (u, t) in UT:
        a(f"v_mul_f32 {t}, {u}, {t}")
    a(f"v_cvt_pk_bf16_f32 {t0}, {t0}, {t1}")
    a(f"v_cmp_gt_u32 vcc, 56, {vLANE}")
    a(f"v_mul_u32_u24 {vB_}, 37, {vLANE}")
    a(f"v_lshrrev_b32 {vB_}, 9, {vB_}")
    a(f"v_lshl_add_u32 {vB_}, {vB_}, 1, {vLANE}")
    a(f"v_bfe_u32 {vC}, {vLANE}, 1, 2")
    a(f"v_lshlrev_b32 {vC}, 4, {vC}")
    a(f"v_and_or_b32 {vC}, {vLANE}, 1, {vC}")
    a(f"v_add_u32 {vC}, 14, {vC}")
    a(f"v_cndmask_b32 {vB_}, {vC}, {vB_}, vcc")
    a(f"v_lshlrev_b32 {vB_}, 2, {vB_}")
    a(f"s_lshl_b32 {sT0}, {sWAVE}, 8")
    a(f"s_add_u32 {sT0}, {sT0}, {L_HL}")
    a(f"v_add_u32 {vB_}, {sT0}, {vB_}")
    a(f"v_cndmask_b32 {t0}, 0, {t0}, vcc")
    a(f"ds_write_b32 {vB_}, {t0}")
    a(f"v_xor_b32 {vW4b}, 0x80, {vW4}")
    a(f"v_and_b32 {vA}, 7, {vLANE}")
    a(f"v_lshlrev_b32 {vA}, 8, {vA}")
    a(f"v_lshl_add_u32 {vA}, {vSQ}, 1, {vA}")
    a(f"v_bfe_u32 {vC}, {vLANE}, 3, 1")
    a(f"v_lshl_add_u32 {vA}, {vC}, 4, {vA}")
    a(f"v_add_u32 {vA}, {L_Q}, {vA}")
    a.nofeed()
    a.flush(base + 8)
    a.lgkm(0)
    a("s_barrier")
    a(f"ds_read_b128 {vq(Q0)}, {vA}")
    a(f"ds_read_b128 {vq(Q0+4)}, {vA} offset:128")
    a(f"v_mov_b32 {vMX}, 0xff800000")
    a.lgkm(0)

    def qk_mfma(t):
        d = D0 + 16 * (t & 1)
        wait(f"K{t}")
        for j in range(2):
            for u in range(4):
                c = "0" if j == 0 else vq(d + 4*u)
                a(f"v_mfma_f32_16x16x32_bf16 {vq(d + 4*u)}, {aq(32*t + 8*u + 4*j)}, {vq(Q0 + 4*j)}, {c}")

    def qk_post(t):
        d = D0 + 16 * (t & 1)
        s = S0 + 8 * t
        for u in range(4):
            for tt in range(2):
                a(f"v_add_f32_dpp v{s + 2*u + tt}, v{d + 4*u + 2*tt + 1}, v{d + 4*u + 2*tt} row_ror:8 row_mask:0xf bank_mask:0xf")
        for u in range(4):
            a(f"v_cvt_pk_bf16_f32 v{T0+u}, v{s+2*u}, v{s+2*u+1}")
        for u in range(4):
            unpack(f"v{s+2*u}", f"v{s+2*u+1}", f"v{T0+u}")
        for i in range(8):
            a(f"v_mul_f32 v{s+i}, {sSCALE}, v{s+i}")
        for u in range(4):
            a(f"v_cvt_pk_bf16_f32 v{T0+u}, v{s+2*u}, v{s+2*u+1}")
        for u in range(4):
            unpack(f"v{s+2*u}", f"v{s+2*u+1}", f"v{T0+u}")
        for u in range(4):
            a(f"v_max3_f32 {vMX}, {vMX}, v{s+2*u}, v{s+2*u+1}")

    a.feed(idx["V1"], P["qk"])
    qk_mfma(0)
    for t in range(8):
        if t < 7:
            if t == 5:
                a.flush(idx["V1"])
            qk_mfma(t + 1)
        qk_post(t)
    stamp("qk")
    a.feed(idx["V2"], P["exp"])
    vNM = f"v{T0+5}"; vL2 = f"v{T0+6}"
    rows_reduce("v_max_f32", [vMX], [vNM])
    a(f"v_mul_f32 {vNM}, {sLOG2E}, {vMX}")
    a(f"v_mov_b32 {vL}, 0")
    a(f"v_mov_b32 {vL2}, 0")
    for t in range(8):
        s = S0 + 8 * t
        for i in range(8):
            a(f"v_fma_f32 v{s+i}, v{s+i}, {sLOG2E}, -{vNM}")
        for i in range(8):
            a(f"v_exp_f32 v{s+i}, v{s+i}")
        for u in range(4):
            a(f"v_add_f32 {vL}, {vL}, v{s+2*u}")
            a(f"v_add_f32 {vL2}, {vL2}, v{s+2*u+1}")
        for u in range(4):
            a(f"v_cvt_pk_bf16_f32 v{s+u}, v{s+2*u}, v{s+2*u+1}")
    a(f"v_add_f32 {vL}, {vL}, {vL2}")
    rows_reduce("v_add_f32", [vL], [vL2])
    a(f"s_lshl_b32 {sT0}, {sB}, 2")
    a(f"s_add_u32 {sT0}, {sT0}, {sHKV}")
    a(f"s_lshl_b32 {sMLG}, {sT0}, 13")
    a(f"s_add_u32 {sMLG}, {sMLG}, {ML}")
    a(f"s_lshl_b32 {sT0}, {sS}, 9")
    a(f"s_lshl_b32 {sT1}, {sWAVE}, 7")
    a(f"s_add_u32 {sT0}, {sT0}, {sT1}")
    a(f"s_add_u32 {sT0}, {sT0}, {sMLG}")
    a(f"s_cmp_eq_u32 {sWAVE}, {7 if 'noml' in dbg else 0}")
    a(f"s_cselect_b32 {sMLG}, {sMLG}, 0x7f000000")
    a(f"s_add_u32 {sMLO}, {sMLG}, 4096")
    a(f"v_mov_b32 v{D0}, {vMX}")
    a(f"v_mov_b32 v{D0+1}, {vTAG}")
    a(f"v_mov_b32 v{D0+2}, {vL}")
    a(f"v_mov_b32 v{D0+3}, {vTAG}")
    a.nofeed()
    a(f"s_mov_b64 exec, 0xff")
    a.room(1)
    if "nomls" not in dbg:
        a(f"buffer_store_dwordx4 {vq(D0)}, {vL16}, {srd(rWS)}, {sT0} offen sc1")
    a(f"s_mov_b64 exec, -1")
    a.feed(idx["V2"], P["exp"])
    a(f"s_lshl_b32 {sT0}, {sS}, 9")
    a(f"v_and_b32 {vMW}, 0x1f0, {vL16}")
    a(f"v_add_u32 {vMW}, {sT0}, {vMW}")
    vRW = f"v{T0}"; vRR = f"v{T0+1}"; vOP = f"v{T0+2}"; vOW = f"v{T0+3}"; vFW = f"v{T0+7}"
    a(f"v_lshrrev_b32 {vA}, 7, {vTR}")
    a(f"v_and_b32 {vB_}, 3, {vA}")
    a(f"v_bfe_u32 {vC}, {vA}, 3, 1")
    a(f"v_lshl_or_b32 {vB_}, {vC}, 2, {vB_}")
    a(f"s_lshl_b32 {sT0}, {sWAVE}, 1")
    a(f"v_xor_b32 {vB_}, {sT0}, {vB_}")
    a(f"v_and_b32 {vC}, 0x18, {vTR}")
    a(f"v_lshl_add_u32 {vC}, {vB_}, 5, {vC}")
    a(f"v_lshl_add_u32 {vTR4}, {vA}, 8, {vC}")
    a(f"v_add_u32 {vTR4}, {L_WO}, {vTR4}")
    a(f"v_xor_b32 {vTR5}, 32, {vTR4}")
    a(f"v_and_b32 {vC}, 3, {vLANE}")
    a(f"v_lshlrev_b32 {vC}, 8, {vC}")
    a(f"v_add_u32 {vBO}, {vC}, {vSQ}")
    a(f"v_add_u32 {vBO}, {L_OL}, {vBO}")
    a(f"v_and_b32 {vC}, 7, {vLANE}")
    a(f"v_mul_u32_u24 {vRW}, {RED_H}, {vC}")
    a(f"v_lshl_add_u32 {vRW}, {vSQ}, 3, {vRW}")
    a(f"s_mul_i32 {sT0}, {sWAVE}, {RED_W}")
    a(f"v_add_u32 {vRW}, {sT0}, {vRW}")
    a(f"v_lshrrev_b32 {vC}, 5, {vTID}")
    a(f"v_mul_u32_u24 {vRR}, {RED_H}, {vC}")
    a(f"v_lshlrev_b32 {vMR}, 4, {vC}")
    a(f"v_add_u32 {vMR}, {L_F}, {vMR}")
    a(f"v_lshlrev_b32 {vOP}, 15, {vC}")
    a(f"v_and_b32 {vC}, 31, {vTID}")
    a(f"v_lshl_add_u32 {vRR}, {vC}, 4, {vRR}")
    a(f"v_lshl_add_u32 {vOP}, {vC}, 4, {vOP}")
    a(f"v_and_b32 {vFW}, 0x70, {vL16}")
    a(f"v_bfe_u32 {vC}, {vLANE}, 3, 2")
    a(f"v_lshl_add_u32 {vFW}, {vC}, 2, {vFW}")
    a(f"v_add_u32 {vFW}, {L_F}, {vFW}")
    a(f"v_bfe_u32 {vC}, {vLANE}, 3, 2")
    a(f"v_lshlrev_b32 {vOW}, 6, {vC}")
    a(f"v_and_b32 {vC}, 7, {vLANE}")
    a(f"v_lshl_add_u32 {vOW}, {vC}, 1, {vOW}")
    a(f"s_lshl_b32 {sT0}, {sWAVE}, 8")
    a(f"s_add_u32 {sT0}, {sT0}, {L_OL}")
    a(f"v_add_u32 {vOW}, {sT0}, {vOW}")
    a(f"v_lshrrev_b32 {vC}, 3, {vLANE}")
    a(f"v_and_b32 {vPUB}, 0x70, {vL16}")
    a(f"v_lshl_add_u32 {vPUB}, {vC}, 12, {vPUB}")
    a(f"v_and_b32 {vB2}, 3, {vLANE}")
    a(f"v_lshlrev_b32 {vB2}, 1, {vB2}")
    a(f"s_lshl_b32 {sT0}, {sRG}, 3")
    a(f"s_add_u32 {sT0}, {sT0}, {sW4C}")
    a(f"v_add_u32 {vB2}, {sT0}, {vB2}")
    a(f"v_bfe_u32 {vC}, {vLANE}, 2, 2")
    a(f"v_lshl_add_u32 {vOUT}, {vC}, 11, {vB2}")
    a(f"v_lshrrev_b32 {vC}, 2, {vLANE}")
    a(f"v_and_b32 {vX1}, 0x30, {vL16}")
    a(f"v_lshl_add_u32 {vX1}, {vC}, 7, {vX1}")
    a(f"s_lshl_b32 {sT0}, {sHKV}, 18")
    a(f"s_lshl_b32 {sT1}, {sB}, 13")
    a(f"s_add_u32 {sT0}, {sT0}, {sT1}")
    a(f"s_lshl_b32 {sT1}, {sS}, 9")
    a(f"s_add_u32 {sT0}, {sT0}, {sT1}")
    a(f"s_add_u32 {sOPO}, {sT0}, {OP}")
    a(f"s_lshl_b32 {sT0}, {sRG}, 15")
    a(f"s_lshl_b32 {sT1}, {sWAVE}, 13")
    a(f"s_add_u32 {sT0}, {sT0}, {sT1}")
    a(f"s_add_u32 {sOPG}, {sT0}, {OP}")
    a(f"s_lshl_b32 {sT2}, {sW4C}, 8")
    a(f"s_lshl_b32 {sT0}, {sWAVE}, 14")
    a(f"s_add_u32 {sT2}, {sT2}, {sT0}")
    a(f"s_lshl_b32 {sT0}, {sRG}, 7")
    a(f"s_add_u32 {sT2}, {sT2}, {sT0}")
    a(f"s_add_u32 {sT2}, {sT2}, {ZP}")
    a(f"s_lshl_b32 {sT0}, {sW4C}, 4")
    a(f"s_add_u32 {sT0}, {sT0}, {RG}")
    a(f"v_and_b32 {vC}, 31, {vLANE}")
    a(f"v_lshlrev_b32 {vC}, 7, {vC}")
    a(f"v_add_u32 {vCWA}, {sT0}, {vC}")
    a.nofeed()
    stamp("sm")

    def factors():
        a(f"s_cmp_lg_u32 {sWAVE}, {7 if 'noml' in dbg else 0}")
        a(f"s_cbranch_scc1 L_nofac")
        sv = a.vm_done
        check_loop("ml", GM + [GMW], issue_ml, tok["ML"])
        m_, t_, l_ = vA, vB_, vC
        a(f"v_max3_f32 {m_}, v{GM[0]}, v{GM[1]}, v{GM[2]}")
        a(f"v_max3_f32 {t_}, v{GM[3]}, v{GM[4]}, v{GM[5]}")
        a(f"v_max3_f32 {m_}, {m_}, v{GM[6]}, v{GM[7]}")
        a(f"v_max_f32 {m_}, {m_}, {t_}")
        a(f"v_max_f32_dpp {m_}, {m_}, {m_} row_ror:8 row_mask:0xf bank_mask:0xf")
        rows_reduce("v_max_f32", [m_], [t_])
        for j in range(8):
            a(f"v_sub_f32 v{GM[j]}, v{GM[j]}, {m_}")
        a(f"v_sub_f32 {vMX}, v{GMW}, {m_}")
        for j in range(8):
            a(f"v_mul_f32 v{GM[j]}, {sLOG2E}, v{GM[j]}")
        a(f"v_mul_f32 {vMX}, {sLOG2E}, {vMX}")
        for j in range(8):
            a(f"v_exp_f32 v{GM[j]}, v{GM[j]}")
        a(f"v_exp_f32 {vMX}, {vMX}")
        a(f"v_mul_f32 {l_}, v{GM[0]}, v{GM[0]+2}")
        for j in range(1, 8):
            a(f"v_fmac_f32 {l_}, v{GM[j]}, v{GM[j]+2}")
        a(f"v_add_f32_dpp {l_}, {l_}, {l_} row_ror:8 row_mask:0xf bank_mask:0xf")
        rows_reduce("v_add_f32", [l_], [t_])
        a(f"v_rcp_f32 {t_}, {l_}")
        a(f"v_fma_f32 {m_}, -{l_}, {t_}, 1.0")
        a(f"v_fma_f32 {t_}, {m_}, {t_}, {t_}")
        a(f"v_mul_f32 {vMX}, {vMX}, {t_}")
        a(f"ds_write_b32 {vFW}, {vMX}")
        a.label("L_nofac")
        a.vm_done = sv
        a.wait_vm(tok["ML"] + 1)
        a(f"v_xor_b32 {vCW0}, {sLOC}, {vCW0}")
        a(f"v_xor_b32 {vCW1}, {vTAG}, {vCW1}")
        a(f"v_or_b32 {vCW0}, {vCW0}, {vCW1}")
        a(f"v_cmp_ne_u32 vcc, 0, {vCW0}")
        a(f"s_or_b32 {sLOC}, vcc_lo, vcc_hi")
        if not zloc:
            a(f"s_mov_b32 {sLOC}, 1")

    def pv(t):
        base = V0 + 32 * (t % 4)
        for e in range(8):
            dd = e >> 1
            sel = sSELHI if e & 1 else sSELLO
            for u in range(4):
                a(f"v_perm_b32 v{D0 + 4*e + u}, v{base + 8*u + 4 + dd}, v{base + 8*u + dd}, {sel}")
            if e >= 1:
                ee = e - 1
                c = "0" if t == 0 else aq(4*ee)
                a(f"v_mfma_f32_16x16x32_bf16 {aq(4*ee)}, {vq(D0 + 4*ee)}, {vq(S0 + 8*t)}, {c}")
        c = "0" if t == 0 else aq(28)
        a(f"v_mfma_f32_16x16x32_bf16 {aq(28)}, {vq(D0 + 28)}, {vq(S0 + 8*t)}, {c}")

    idx["WOa"] = idx["W2"] + wo_early
    idx["WOb"] = max(idx["WOa"], idx["WOa"] + wo7)
    idx["W2a"] = min(idx["W2"], idx["V7"] + w2a)
    nxt = ["V3", "V4", "V5", "V6", "V7", "W2a", "WOa", "WOb"]
    a.flush(idx["V2"])
    for t in range(8):
        wait(f"V{t}")
        a.feed(idx[nxt[t]], P["pv"])
        pv(t)
        a.nofeed()
        a.flush(idx[nxt[t]])
        if t == facpos:
            factors()
            stamp("fac")
    stamp("pv")
    a(f"s_mov_b32 exec_lo, 0x00ff00ff")
    a(f"s_mov_b32 exec_hi, 0x00ff00ff")
    for e in range(8):
        a(f"ds_write_b128 {vRW}, {aq(4*e)} offset:{L_RED + 16*e}")
    a(f"s_mov_b64 exec, -1")
    R = D0
    TB = [vTAG, "v44", "v45", "v46"]
    for k in range(1, 4):
        a(f"v_lshrrev_b32 {TB[k]}, {8*k}, {vTAG}")
    a(f"s_movk_i32 {sT3}, 0xff")
    a(f"s_add_u32 {sT0}, {sOPG}, 4096")
    a.lgkm(0)
    stamp("red_w")
    a("s_barrier")
    stamp("b5")
    a(f"ds_read_b128 {vq(R+16)}, {vMR}")
    for w in range(4):
        a(f"ds_read_b128 {vq(R + 4*w)}, {vRR} offset:{L_RED + w*RED_W}")
    for w in range(4):
        a.lgkm(0 if stamps else 3 - w)
        for r in range(4):
            if w == 0:
                a(f"v_mul_f32 v{R+r}, v{R+16}, v{R+r}")
            else:
                a(f"v_fmac_f32 v{R+r}, v{R+16+w}, v{R+4*w+r}")
    for r in range(4):
        a(f"v_bfi_b32 v{48+r}, {sT3}, {TB[r]}, v{R+r}")
    a(f"buffer_store_dwordx4 {vq(48)}, {vOP}, {srd(rWS)}, {sOPO} offen sc1")
    stamp("opub")
    a(f"s_lshl_b32 {sT3}, {sWAVE}, 13")
    a.flush(idx["WO"])
    a(f"s_movk_i32 {sT3}, 0xff")
    if "exit" in dbg:
        a("s_waitcnt vmcnt(0)")
        stamp("wo")
        a(f"s_cmp_lg_u32 {sWAVE}, 0")
        a(f"s_cbranch_scc1 L_end")
        a(f"s_branch L_stamps")
    GO = V0

    def issue_op(fl, js=range(8)):
        t = None
        for j in js:
            so = sOPG if j < 4 else sT0
            t = a(f"buffer_load_dwordx4 {vq(GO + 4*j)}, {vL16}, {srd(rWS)}, {so} offen offset:{1024*(j&3)}{fl}")
        return t

    tOP = issue_op(fo)
    AWO, AW2 = 64, 96
    Z = D0
    BH, BO = S0, S0 + 16
    a.wait_vm(tok["W2"])
    a("s_barrier")
    for ks in range(4):
        a(f"ds_read_b128 {vq(BH + 4*ks)}, {vBO} offset:{L_HL - L_OL + 64*ks}")
    for (base, off) in ((AW2, 32768), (AWO, 0)):
        if base == AWO:
            a.wait_vm(tok["WO"])
            stamp("wo")
            a("s_barrier")
        for ks in range(4):
            for c in range(2):
                for hh in range(2):
                    a(f"ds_read_b64_tr_b16 {aq(base + 16*c + 4*ks + 2*hh, 2)}, {vTR5 if c else vTR4} offset:{off + ks*8192 + hh*1024}")
            if ks == 1:
                a.lgkm(0)
        if base == AW2:
            a.lgkm(0)
            for ks in range(4):
                for c in range(2):
                    cc = "0" if ks == 0 else vq(Z + 4*c)
                    a(f"v_mfma_f32_16x16x32_bf16 {vq(Z + 4*c)}, {vq(BH + 4*ks)}, {aq(AW2 + 16*c + 4*ks)}, {cc}")
    check_loop("op", [GO + 4*j for j in range(8)], issue_op, tOP, emb=TB)
    stamp("op_ok")
    O = V0 + 32
    for r in range(4):
        a(f"v_add_f32 v{O+r}, v{GO+r}, v{GO+4+r}")
        a(f"v_add_f32 v{O+4+r}, v{GO+8+r}, v{GO+12+r}")
        a(f"v_add_f32 v{O+8+r}, v{GO+16+r}, v{GO+20+r}")
        a(f"v_add_f32 v{O+12+r}, v{GO+24+r}, v{GO+28+r}")
    for r in range(4):
        a(f"v_add_f32 v{O+r}, v{O+r}, v{O+4+r}")
        a(f"v_add_f32 v{O+8+r}, v{O+8+r}, v{O+12+r}")
    for r in range(4):
        a(f"v_add_f32 v{O+r}, v{O+r}, v{O+8+r}")
    for r in range(4):
        a(f"v_mov_b32 v{O+4+r}, v{O+r}")
    for r in range(4):
        a(f"v_permlane32_swap_b32 v{O+r}, v{O+4+r}")
    for r in range(4):
        a(f"v_add_f32 v{O+r}, v{O+r}, v{O+4+r}")
    a(f"v_cvt_pk_bf16_f32 v{O}, v{O}, v{O+1}")
    a(f"v_cvt_pk_bf16_f32 v{O+2}, v{O+2}, v{O+3}")
    a(f"s_mov_b32 exec_hi, 0")
    a(f"ds_write_b16 {vOW}, v{O}")
    a(f"ds_write_b16_d16_hi {vOW}, v{O} offset:16")
    a(f"ds_write_b16 {vOW}, v{O+2} offset:32")
    a(f"ds_write_b16_d16_hi {vOW}, v{O+2} offset:48")
    a(f"s_mov_b64 exec, -1")
    a.lgkm(0)
    stamp("cmb")
    a("s_barrier")
    stamp("b6")
    for ks in range(4):
        a(f"ds_read_b128 {vq(BO + 4*ks)}, {vBO} offset:{64*ks}")
    for ks in range(4):
        a.lgkm(0 if stamps else 3 - ks)
        for c in range(2):
            a(f"v_mfma_f32_16x16x32_bf16 {vq(Z + 4*c)}, {vq(BO + 4*ks)}, {aq(AWO + 16*c + 4*ks)}, {vq(Z + 4*c)}")
    ZS = 48
    a(f"s_cmp_eq_u32 {sLOC}, 0")
    for r in range(4):
        a(f"v_mov_b32_dpp v{Z + r}, v{Z + 4 + r} quad_perm:[0,1,2,3] row_mask:0x2 bank_mask:0xf")
    for r in range(4):
        a(f"v_bfi_b32 v{ZS + r}, {sT3}, {TB[r]}, v{Z + r}")
    a(f"s_mov_b32 exec_hi, 0")
    a(f"s_cbranch_scc1 L_zplain")
    a(f"buffer_store_dwordx4 {vq(ZS)}, {vPUB}, {srd(rWS)}, {sT2} offen sc1")
    a(f"s_branch L_zdone")
    a.label("L_zplain")
    a.vm_issued -= 1
    a(f"buffer_store_dwordx4 {vq(ZS)}, {vPUB}, {srd(rWS)}, {sT2} offen")
    a.label("L_zdone")
    a(f"s_mov_b64 exec, -1")
    stamp("zpub")
    a(f"s_cmp_lg_u32 {sWAVE}, 0")
    a(f"s_cbranch_scc1 L_end")
    GZ = V0 + 64
    a(f"s_lshr_b32 {sT0}, {sRG}, 1")
    a(f"s_lshl_b32 {sT0}, {sT0}, 12")
    a(f"s_lshl_b32 {sT1}, {sW4C}, 8")
    a(f"s_add_u32 {sT0}, {sT0}, {sT1}")
    a(f"s_and_b32 {sT1}, {sRG}, 1")
    a(f"s_lshl_b32 {sT1}, {sT1}, 6")
    a(f"s_add_u32 {sT0}, {sT0}, {sT1}")
    a(f"s_add_u32 {sT0}, {sT0}, {ZP}")

    def issue_z(fl, js=range(2)):
        t = None
        for j in js:
            t = a(f"buffer_load_dwordx4 {vq(GZ + 4*j)}, {vX1}, {srd(rWS)}, {sT0} offen offset:{2048*j}{fl}")
        return t

    tZ = issue_z(" sc1")
    x0, b0 = f"v{O}", f"v{O+1}"
    a(f"v_and_b32 {x0}, 0xffff0000, {vX}")
    a(f"v_and_b32 {b0}, 0xffff0000, {vB2}")
    a(f"v_add_f32 {x0}, {x0}, {b0}")
    check_loop("z", [GZ + 4*j for j in range(2)], issue_z, tZ, emb=TB)
    stamp("z_ok")
    for r in range(4):
        a(f"v_add_f32 v{GZ+r}, v{GZ+r}, v{GZ+4+r}")
    for b in (4, 8):
        for r in range(4):
            a(f"v_add_f32_dpp v{GZ+r}, v{GZ+r}, v{GZ+r} row_ror:{b} row_mask:0xf bank_mask:0xf")
    for r in range(1, 4):
        a(f"v_mov_b32_dpp v{GZ}, v{GZ+r} quad_perm:[0,1,2,3] row_mask:0xf bank_mask:{hex(1 << r)}")
    rows_reduce("v_add_f32", [f"v{GZ}"], [f"v{GZ+1}"])
    a(f"v_add_f32 {x0}, {x0}, v{GZ}")
    a(f"v_cvt_pk_bf16_f32 {x0}, {x0}, {x0}")
    a(f"s_mov_b64 exec, 0xffff")
    a(f"global_store_short {vOUT}, {x0}, {sp(pOUT)}")
    if stamps:
        a.label("L_stamps")
        stamp("end")
        a.lgkm(0)
        a(f"s_mov_b64 exec, 1")
        a(f"s_mul_i32 {sT0}, s2, {8*len(STAMPS)}")
        a(f"s_add_u32 {sT0}, {sT0}, 0x8000000")
        a(f"v_mov_b32 {vA}, {sT0}")
        for i, (lo, hi) in enumerate(STAMPS):
            a(f"v_mov_b32 v{D0+2*i}, s{lo}")
            a(f"v_mov_b32 v{D0+2*i+1}, s{hi}")
        for i in range(len(STAMPS)):
            a(f"global_store_dwordx2 {vA}, {vq(D0+2*i, 2)}, {sp(pWS)} offset:{8*i}")
    a(f"s_cmp_lg_u32 s2, 0")
    a(f"s_cbranch_scc1 L_end")
    a(f"s_mov_b64 exec, 1")
    a(f"v_mov_b32 {vA}, 0")
    a(f"global_store_dword {vA}, {vTAG}, {sp(pWS)}")
    a.label("L_end")
    a("s_endpgm")
    assert a.fi == len(a.fq)
    a.raw('.section .rodata,"a"')
    a.raw(".p2align 6")
    a.raw(f".amdhsa_kernel {NAME}_kernel")
    a.raw("  .amdhsa_next_free_vgpr 512")
    a.raw("  .amdhsa_next_free_sgpr 102")
    a.raw("  .amdhsa_accum_offset 256")
    a.raw("  .amdhsa_group_segment_fixed_size 0")
    a.raw("  .amdhsa_kernarg_size 104")
    a.raw("  .amdhsa_user_sgpr_count 2")
    a.raw("  .amdhsa_user_sgpr_kernarg_segment_ptr 1")
    a.raw("  .amdhsa_system_sgpr_workgroup_id_x 1")
    a.raw("  .amdhsa_float_denorm_mode_32 3")
    a.raw(".end_amdhsa_kernel")
    return a.text()


if __name__ == "__main__":
    import argparse, json
    ap = argparse.ArgumentParser()
    ap.add_argument("-o", default="cdna_kernels/" + NAME + ".s")
    ap.add_argument("--stamps", default="")
    ap.add_argument("--kw", default="{}", help="json dict of gen() keyword arguments")
    x = ap.parse_args()
    kw = json.loads(x.kw)
    open(x.o, "w").write(gen(stamps=x.stamps.split(",") if x.stamps else None, **kw))
```

```python
import sys, struct
sys.path.insert(0, "dev")
from asmlib import Asm

NAME = "parallel_sum__gqa_block_cached__mixer_channel_mlp__decode"
HEADER = open("cdna_kernels/" + NAME + ".s.ref").read().split("; Override launch")[0]


def f32(x):
    return "0x%08x" % struct.unpack("<I", struct.pack("<f", x))[0]


QP, HP, FH, OP, ML, RG, ZP, WS_SIZE = 0x100000, 0x180000, 0x1c0000, 0x200000, 0x300000, 0x340000, 0x400000, 0x600000
L_WQ, L_W1, L_WO, L_W2 = 0, 32768, 65536, 98304
L_W1B = L_WO
L_RED = 0
L_XN, L_Y, L_Q, L_F, L_OL, L_HL = 131072, 139264, 147456, 149504, 149760, 150784
LDS_BYTES = 151808
RED_W, RED_H = 4224, 528

sWAVE = "s3"
pX, pK, pV, pWQ, pWO, pW1, pB1, pW2, pB2, pOUT, pWS = 16, 18, 20, 22, 24, 28, 30, 32, 34, 36, 40
sF0, sF1 = "s26", "s27"
pDBG = 38
sCG1, sMLO, sLOC = "s0", "s1", "s80"
sOPO, sOPG = "s42", "s43"
rK, rV, rWQ, rW1, rWO, rW2, rWS = 44, 48, 52, 56, 60, 64, 68
sT0, sT1, sB, sHKV, sS, sKQ, sCG, sRG, sCG4 = ["s%d" % i for i in range(72, 81)]
sSELLO, sSELHI, sSCALE, sLOG2E, sT2 = "s81", "s82", "s83", "s84", "s85"
sMLG, sW4C = "s86", "s87"
sCNT, sT3 = "s88", "s89"
STAMPS = [(4, 5), (6, 7), (8, 9), (10, 11), (12, 13), (14, 15), (90, 91), (92, 93), (94, 95), (96, 97), (98, 99), (100, 101)]
vTID, vLANE, vK, vV, vL16, vTAG, vTR, vPUB, vB1, vW4, vSQ, vMX, vL = ["v%d" % i for i in range(13)]
vA, vB_, vC = "v13", "v14", "v15"
vX, vX1, vB2, vOUT, vTR5, vTR4, vBO, vMR = ["v%d" % i for i in range(16, 24)]
Q0 = 16
D0 = 24
T0 = 56
S0 = 64
V0 = 128


def srd(r):
    return f"s[{r}:{r+3}]"


def sp(r):
    return f"s[{r}:{r+1}]"


def vq(r, n=4):
    return f"v[{r}:{r+n-1}]"


def aq(r, n=4):
    return f"a[{r}:{r+n-1}]"


def gen(nt=" nt", wnt=" nt", stamps=None, limit=1 << 14, xaff=1, fq="", fo=" sc1", wsplit=1, dbg="", masked=2, slp=0, gpos=6,
        per=None, zloc=1, mlpos=5, facpos=4, wo_early=-7, wo7=0, w2a=2, qemb=0, gafter=2, lqk='V1', lexp='V2', burst=0, opfirst=0, opmid=0, vbar=-1):
    a = Asm()
    if "nost" in dbg or "nobar" in dbg:
        class A2(Asm):
            def __call__(self, text):
                if "nost" in dbg and text.startswith("buffer_store"):
                    return self.vm_issued - 1
                if "nobar" in dbg and text.startswith("s_barrier"):
                    return None
                return Asm.__call__(self, text)
        a = A2()
    P = dict(ln=22, proj=10, qh=10, qk=40, exp=30, pv=5)
    P.update(per or {})

    def stamp(name):
        if stamps and name in stamps:
            lo, hi = STAMPS[stamps.index(name)]
            a(f"s_memrealtime s[{lo}:{hi}]")

    def rows_reduce(op, regs, tmps):
        for sw in ("v_permlane16_swap_b32", "v_permlane32_swap_b32"):
            for v, t in zip(regs, tmps):
                a(f"v_mov_b32 {t}, {v}")
            for v, t in zip(regs, tmps):
                a(f"{sw} {v}, {t}")
            for v, t in zip(regs, tmps):
                a(f"{op} {v}, {v}, {t}")

    def allreduce(op, v, t):
        for b in (8, 4, 2, 1):
            a(f"{op}_dpp {v}, {v}, {v} row_ror:{b} row_mask:0xf bank_mask:0xf")
        rows_reduce(op, [v], [t])

    def rne(dst, src):
        a(f"v_cvt_pk_bf16_f32 {dst}, {src}, {src}")
        a(f"v_lshlrev_b32 {dst}, 16, {dst}")

    def unpack(lo, hi, pk):
        a(f"v_lshlrev_b32 {lo}, 16, {pk}")
        a(f"v_and_b32 {hi}, 0xffff0000, {pk}")

    def check_loop(name, quads, issue, tok, emb=None, equads=(), clean=None, once=False):
        a(f"s_mov_b32 {sCNT}, 0")
        a.wait_vm(tok)
        stamp("first_" + name)
        a.label(f"L_chk_{name}")
        mn, mx = vA, vB_
        if equads:
            for qi, q in enumerate(equads):
                for k in range(4):
                    a(f"v_xor_b32 v{clean + 4*qi + k}, v{q+k}, {emb[k]}")
            regs = [f"v{clean + i}" for i in range(4 * len(equads))]
            acc = [mn, mx]
            a(f"v_or_b32 {mn}, {regs[0]}, {regs[1]}")
            a(f"v_or_b32 {mx}, {regs[2]}, {regs[3]}")
            for i in range(4, len(regs), 2):
                a(f"v_or3_b32 {acc[(i >> 1) & 1]}, {acc[(i >> 1) & 1]}, {regs[i]}, {regs[i+1]}")
            a(f"v_or_b32 {mn}, {mn}, {mx}")
            a(f"v_and_b32 {mn}, 0xff, {mn}")
        for qi, q in enumerate(quads):
            for k in (1, 3):
                if not equads and qi == 0 and k == 1:
                    a(f"v_xor_b32 {mn}, v{q+k}, {vTAG}")
                else:
                    a(f"v_bitop3_b32 {mn}, {mn}, v{q+k}, {vTAG} bitop3:0xf6")
        a(f"v_cmp_ne_u32 vcc, 0, {mn}")
        a(f"s_cbranch_vccz L_ok_{name}")
        if not once:
            a(f"s_add_u32 {sCNT}, {sCNT}, 1")
            a(f"s_cmp_gt_u32 {sCNT}, {limit}")
            a(f"s_cbranch_scc1 L_ok_{name}")
        sv = (a.vm_issued, a.vm_done)
        if a.vm_issued - a.vm_done > 40:
            a.vm_done = a.vm_issued - 40
            a("s_waitcnt vmcnt(40)")
        if equads and not quads:
            for qi, q in enumerate(equads):
                c = clean + 4 * qi
                a(f"v_or3_b32 {mn}, v{c}, v{c+1}, v{c+2}")
                a(f"v_or_b32 {mn}, {mn}, v{c+3}")
                a(f"v_and_b32 {mn}, 0xff, {mn}")
                a(f"v_cmp_ne_u32 vcc, 0, {mn}")
                a(f"s_cbranch_vccz L_skip_{name}{qi}")
                a("s_mov_b64 exec, vcc")
                issue(" sc1", [qi])
                a("s_mov_b64 exec, -1")
                a.label(f"L_skip_{name}{qi}")
        else:
            a("s_mov_b64 exec, vcc")
            issue(" sc1")
            a("s_mov_b64 exec, -1")
        if slp and name == "op":
            a(f"s_sleep {slp}")
        if once:
            a.label(f"L_ok_{name}")
            a("s_waitcnt vmcnt(0)")
            a.vm_issued = sv[0]
            a.vm_done = sv[0]
            return
        a("s_waitcnt vmcnt(0)")
        a.vm_issued, a.vm_done = sv
        a(f"s_branch L_chk_{name}")
        a.label(f"L_ok_{name}")
        if stamps and ("cnt_" + name) in stamps:
            lo, hi = STAMPS[stamps.index("cnt_" + name)]
            a(f"s_mov_b32 s{lo}, {sCNT}")
            a(f"s_mov_b32 s{hi}, 0")

    def tag_bytes(regs):
        for k in range(4):
            a(f"v_bfe_u32 {regs[k]}, {vTAG}, {8*k}, 8")

    a.raw(HEADER.rstrip())
    a.raw(f"; @launch grid=(256,1,1) block=(256,1,1) lds={LDS_BYTES}")
    a.raw('.amdgcn_target "amdgcn-amd-amdhsa--gfx950"')
    a.raw(".text")
    a.raw(f".globl {NAME}_kernel")
    a.raw(".p2align 8")
    a.raw(f".type {NAME}_kernel,@function")
    a.raw(f"{NAME}_kernel:")
    a("s_cmp_ge_u32 s2, 256")
    a("s_cbranch_scc1 L_end")
    a("s_load_dwordx16 s[16:31], s[0:1], 0")
    a("s_load_dwordx8 s[32:39], s[0:1], 64")
    a("s_load_dwordx2 s[40:41], s[0:1], 96")
    stamp("start")
    vW = "v56"; vW1 = "v57"; vPF = "v58"; vZ = "v59"
    a(f"s_getpc_b64 s[42:43]")
    a.label("L_pc")
    a(f"v_lshlrev_b32 {vPF}, 7, {vTID}")
    a(f"v_min_u32 {vPF}, L_end-L_pc, {vPF}")
    if "nopf" not in dbg:
        a(f"global_load_dword {vPF}, {vPF}, s[42:43]")
    a(f"v_lshrrev_b32 {vA}, 6, {vTID}")
    a(f"v_and_b32 {vLANE}, 63, {vTID}")
    a(f"v_readfirstlane_b32 {sWAVE}, {vA}")
    a(f"v_lshlrev_b32 {vL16}, 4, {vLANE}")
    a(f"v_lshl_add_u32 {vV}, {vA}, 11, {vL16}")
    a(f"s_bfe_u32 {sKQ}, s2, 0x20001")
    a(f"s_and_b32 {sCG}, s2, 1")
    a(f"s_lshl_b32 {sCG}, {sCG}, 5")
    a(f"s_lshr_b32 {sT0}, s2, 3")
    a(f"s_add_u32 {sCG}, {sCG}, {sT0}")
    a(f"v_lshrrev_b32 {vB_}, 3, {vTID}")
    a(f"v_and_b32 {vC}, 7, {vB_}")
    a(f"v_lshl_add_u32 {vB_}, {vA}, 6, {vC}")
    a(f"s_lshl_b32 {sT0}, {sKQ}, 8")
    a(f"v_add_u32 {vB_}, {sT0}, {vB_}")
    a(f"v_and_b32 {vC}, 0x70, {vL16}")
    a(f"v_lshl_add_u32 {vW}, {vB_}, 13, {vC}")
    a(f"v_mul_u32_u24 {vW1}, 7168, {vB_}")
    a(f"v_add_u32 {vW1}, {vW1}, {vC}")
    a(f"v_mov_b32 {vZ}, 0")
    a(f"s_lshl_b32 {sT2}, {sCG}, 7")
    a(f"s_lshl_b32 {sT3}, {sWAVE}, 13")
    a(f"s_mov_b32 s{rWQ+2}, 0x800000")
    a(f"s_mov_b32 s{rWQ+3}, 0x20000")
    a(f"s_mov_b32 s{rW1+3}, 0x20000")
    a.lgkm(0)
    X = S0
    a(f"global_load_dwordx4 {vq(X)}, {vV}, {sp(pX)}")
    tX = a(f"global_load_dwordx4 {vq(X+4)}, {vV}, {sp(pX)} offset:1024")
    a(f"s_mov_b64 s[{rWQ}:{rWQ+1}], {sp(pWQ)}")
    a(f"s_mov_b64 s[{rW1}:{rW1+1}], {sp(pW1)}")
    for j in range(8):
        a(f"s_add_u32 m0, {sT3}, {L_WQ + j*1024}")
        a(f"s_add_u32 {sT1}, {sT2}, {j*8*8192}")
        a(f"buffer_load_dwordx4 {vW}, {srd(rWQ)}, {sT1} offen{wnt} lds")
    if wsplit == 0:
        a(f"s_mov_b32 {sCG1}, {sCG}")
        a(f"s_cmp_lt_u32 {sCG}, 56")
        a(f"s_cselect_b32 s{rW1+2}, 0x700000, 0")
    else:
        a(f"s_lshr_b32 {sT0}, {sCG}, 3")
        a(f"s_sub_u32 {sCG1}, {sCG}, {sT0}")
        a(f"s_and_b32 {sT0}, {sCG}, 7")
        a(f"s_cmp_gt_u32 {sT0}, 3")
        a(f"s_subb_u32 {sCG1}, {sCG1}, 0")
        if wsplit == 2:
            a(f"s_lshl_b32 {sCG1}, {sCG1}, 1")
            a(f"s_and_b32 {sT1}, s2, 1")
            a(f"s_cselect_b32 {sT0}, 3, {sT0}")
        a(f"s_cmp_lg_u32 {sT0}, 3")
        a(f"s_cselect_b32 s{rW1+2}, 0x700000, 0")
        a(f"s_cselect_b32 {sCG1}, {sCG1}, 60")
    a(f"s_lshl_b32 {sT2}, {sCG1}, 7")
    W1IM = [L_W1, L_W1B] if wsplit == 2 else [L_W1]
    for k, lb in enumerate(W1IM):
        for j in range(8):
            a(f"s_add_u32 m0, {sT3}, {lb + j*1024}")
            a(f"s_add_u32 {sT1}, {sT2}, {j*8*7168 + 128*k}")
            tW = a(f"buffer_load_dwordx4 {vW1}, {srd(rW1)}, {sT1} offen{wnt} lds")
    tE = a(f"global_load_dword {vTAG}, {vZ}, {sp(pWS)}")
    stamp("w_iss")
    a(f"v_bfe_u32 {vB_}, {vLANE}, 2, 2")
    a(f"v_bfe_u32 {vC}, {vLANE}, 1, 1")
    a(f"v_lshl_add_u32 {vB_}, {vC}, 2, {vB_}")
    a(f"v_lshlrev_b32 {vK}, 8, {vB_}")
    a(f"v_lshl_add_u32 {vK}, {vA}, 11, {vK}")
    a(f"v_lshrrev_b32 {vB_}, 4, {vLANE}")
    a(f"v_lshl_add_u32 {vK}, {vB_}, 5, {vK}")
    a(f"v_and_b32 {vC}, 1, {vLANE}")
    a(f"v_lshl_add_u32 {vK}, {vC}, 4, {vK}")
    if xaff:
        a(f"s_and_b32 {sT0}, s2, 7")
        a(f"s_lshl_b32 {sT0}, {sT0}, 1")
        a(f"s_bfe_u32 {sT1}, s2, 0x10003")
        a(f"s_add_u32 {sT0}, {sT0}, {sT1}")
        a(f"s_lshr_b32 {sB}, {sT0}, 2")
        a(f"s_and_b32 {sHKV}, {sT0}, 3")
        a(f"s_lshr_b32 {sS}, s2, 4")
        a(f"s_lshl_b32 {sT0}, {sT0}, 4")
        a(f"s_add_u32 {sT0}, {sT0}, {sS}")
        a(f"s_lshl_b32 {sT0}, {sT0}, 18")
    else:
        a(f"s_lshr_b32 {sB}, s2, 6")
        a(f"s_bfe_u32 {sHKV}, s2, 0x20004")
        a(f"s_and_b32 {sS}, s2, 15")
        a(f"s_lshl_b32 {sT0}, s2, 18")
    a(f"s_add_u32 s{rK}, s{pK}, {sT0}")
    a(f"s_addc_u32 s{rK+1}, s{pK+1}, 0")
    a(f"s_add_u32 s{rV}, s{pV}, {sT0}")
    a(f"s_addc_u32 s{rV+1}, s{pV+1}, 0")
    a(f"s_lshr_b32 {sRG}, s2, 3")
    a(f"s_getreg_b32 {sLOC}, hwreg(HW_REG_XCC_ID, 0, 4)")
    for r in (rK, rV, rWO, rW2, rWS):
        a(f"s_mov_b32 s{r+3}, 0x20000")
    a(f"s_mov_b32 s{rK+2}, 0x40000")
    a(f"s_mov_b32 s{rV+2}, 0x40000")
    a(f"s_mov_b32 s{rWO+2}, 0x800000")
    a(f"s_mov_b32 s{rW2+2}, 0x700000")
    a(f"s_mov_b32 s{rWS+2}, {WS_SIZE}")
    for (r, p) in ((rWO, pWO), (rW2, pW2), (rWS, pWS)):
        a(f"s_mov_b64 s[{r}:{r+1}], {sp(p)}")

    tok = {}
    idx = {}

    def q_tile(kind, t):
        for u in range(4):
            for j in range(2):
                def f(u=u, j=j):
                    if j == 0:
                        a(f"s_mov_b32 {sF0}, {t*32768 + u*8192}")
                    if kind == "K":
                        tok[f"K{t}"] = a(f"buffer_load_dwordx4 {aq(32*t + 8*u + 4*j)}, {vK}, {srd(rK)}, {sF0} offen offset:{j*128}{nt}")
                    else:
                        tok[f"V{t}"] = a(f"buffer_load_dwordx4 {vq(V0 + 32*(t % 4) + 8*u + 4*j)}, {vV}, {srd(rV)}, {sF0} offen offset:{j*1024}{nt}")
                a.fq.append(f)
        idx[f"{kind}{t}"] = len(a.fq)

    def q_w(name, r, lb, rows):
        for j in range(rows // 4):
            def f(j=j):
                if j == 0:
                    a(f"s_lshl_b32 {sF1}, {sRG}, 2")
                    a(f"s_add_u32 {sF1}, {sF1}, {sWAVE}")
                    a(f"s_mul_i32 {sF1}, {sF1}, {rows*2048}")
                    if "rotw" in dbg:
                        a(f"s_lshl_b32 {sF0}, {sRG}, 8")
                        a(f"s_add_u32 {sF0}, {sF0}, {sW4C}")
                        a(f"s_and_b32 {sF0}, {sF0}, 0x7ff")
                        a(f"s_add_u32 {sF1}, {sF1}, {sF0}")
                    else:
                        a(f"s_add_u32 {sF1}, {sF1}, {sW4C}")
                a(f"s_add_u32 m0, {sT3}, {lb + j*1024}")
                a(f"s_add_u32 {sF0}, {sF1}, {j*8192}")
                tok[name] = a(f"buffer_load_dwordx4 {vW4b if j & 2 else vW4}, {srd(r)}, {sF0} offen{wnt} lds")
            a.fq.append(f)
        idx[name] = len(a.fq)

    GM = [S0 + 8*t + 4 for t in range(8)]
    vW4b, vCW0, vCW1, vCWA = vB1, "v60", "v61", "v62"

    GMO = 52

    def issue_ml(fl, js=range(9)):
        t = None
        for j in js:
            if j == 8:
                t = a(f"buffer_load_dwordx4 {vq(GMW)}, {vMW}, {srd(rWS)}, {sMLG} offen{fl}")
                continue
            so = sMLG if j < 4 else sMLO
            t = a(f"buffer_load_dwordx4 {vq(GM[j])}, {vL16}, {srd(rWS)}, {so} offen offset:{1024*(j&3)}{fl}")
        return t

    GMW, vMW = S0, vL

    def q_ml():
        for j in range(9):
            def f(j=j):
                tok["ML"] = issue_ml(" sc1", [j])
            a.fq.append(f)
        a.fq.append(lambda: a(f"buffer_load_dwordx2 v[60:61], {vCWA}, {srd(rWS)}, 0 offen sc1"))
        a.fq.append(lambda: tok.__setitem__("FH", issue_fh(" sc1")))
        idx["ML"] = len(a.fq)

    GF, vFG = S0 + 8, vK

    def issue_fh(fl):
        return a(f"buffer_load_dwordx4 {vq(GF)}, {vFG}, {srd(rWS)}, 0 offen{fl}")

    for t in range(8):
        q_tile("K", t)
    for t in range(8):
        if t == mlpos and "noqml" not in dbg:
            q_ml()
        q_tile("V", t)
    a.fq.append(lambda: a(f"global_load_short_d16_hi {vX}, {vOUT}, {sp(pX)}"))
    a.fq.append(lambda: a(f"global_load_short_d16_hi {vB2}, {vB2}, {sp(pB2)}"))
    q_w("W2", rW2, L_W2, 28)
    q_w("WO", rWO, L_WO, 32)

    def wait(name):
        a.flush(idx[name])
        a.wait_vm(tok[name])

    a(f"s_mov_b32 {sSELLO}, 0x05040100")
    a(f"s_mov_b32 {sSELHI}, 0x07060302")
    a(f"s_mov_b32 {sSCALE}, {f32(128 ** -0.5)}")
    a(f"s_mov_b32 {sLOG2E}, {f32(1.4426950408889634)}")
    a(f"v_lshrrev_b32 {vA}, 4, {vLANE}")
    a(f"v_lshlrev_b32 {vSQ}, 4, {vA}")
    a(f"v_bfe_u32 {vB_}, {vLANE}, 2, 2")
    a(f"v_lshl_add_u32 {vB_}, {vA}, 3, {vB_}")
    a(f"v_and_b32 {vC}, 3, {vLANE}")
    a(f"v_lshlrev_b32 {vC}, 3, {vC}")
    a(f"v_lshl_add_u32 {vTR}, {vB_}, 7, {vC}")
    a(f"v_and_b32 {vB_}, 15, {vLANE}")
    if qemb:
        a(f"v_lshl_add_u32 {vPUB}, {vB_}, 16, {vSQ}")
    else:
        a(f"v_lshlrev_b32 {vB_}, 3, {vB_}")
        a(f"v_lshl_add_u32 {vPUB}, {vA}, 17, {vB_}")
    a(f"v_and_b32 {vB_}, 0xf0, {vL16}")
    a(f"v_lshlrev_b32 {vC}, 5, {vA}")
    a(f"v_xor_b32 {vB_}, {vB_}, {vC}")
    a(f"v_lshl_add_u32 {vW4}, {vA}, 11, {vB_}")
    a(f"s_and_b32 {sW4C}, s2, 7")
    a(f"s_lshl_b32 {sW4C}, {sW4C}, 8")
    for i in range(4):
        a(f"v_mov_b32 v{D0+i}, 0")
    a(f"v_add_u32 {vA}, {sT3}, {vL16}")
    a(f"v_add_u32 {vA}, {L_W2 + 7168}, {vA}")
    a(f"ds_write_b128 {vA}, {vq(D0)}")

    XF = S0 + 16
    DV = S0 + 32
    a.wait_vm(tX)
    stamp("x")

    def layernorm(ldsoff):
        if "noln" in dbg:
            return
        s_, m_, r_, t_ = "v112", "v113", "v114", "v115"
        for i in range(8):
            unpack(f"v{XF+2*i}", f"v{XF+2*i+1}", f"v{X+i}")
        for i in range(8):
            a(f"v_add_f32 v{DV+i}, v{XF+2*i}, v{XF+2*i+1}")
        for i in range(4):
            a(f"v_add_f32 v{DV+i}, v{DV+i}, v{DV+4+i}")
        a(f"v_add_f32 v{DV}, v{DV}, v{DV+2}")
        a(f"v_add_f32 v{DV+1}, v{DV+1}, v{DV+3}")
        a(f"v_add_f32 {m_}, v{DV}, v{DV+1}")
        allreduce("v_add_f32", m_, t_)
        a(f"v_mul_f32 {m_}, {f32(1.0/1024)}, {m_}")
        for i in range(16):
            a(f"v_sub_f32 v{DV+i}, v{XF+i}, {m_}")
        a(f"v_mul_f32 {s_}, v{DV}, v{DV}")
        a(f"v_mul_f32 {r_}, v{DV+1}, v{DV+1}")
        for i in range(2, 16, 2):
            a(f"v_fmac_f32 {s_}, v{DV+i}, v{DV+i}")
            a(f"v_fmac_f32 {r_}, v{DV+i+1}, v{DV+i+1}")
        a(f"v_add_f32 {s_}, {s_}, {r_}")
        allreduce("v_add_f32", s_, t_)
        a(f"v_mul_f32 {s_}, {f32(1.0/1024)}, {s_}")
        rne(m_, m_)
        rne(s_, s_)
        a(f"v_add_f32 {s_}, {f32(1e-5)}, {s_}")
        rne(s_, s_)
        a(f"v_sqrt_f32 {s_}, {s_}")
        rne(s_, s_)
        a(f"v_rcp_f32 {r_}, {s_}")
        for i in range(16):
            a(f"v_sub_f32 v{DV+i}, v{XF+i}, {m_}")
        a.lgkm(0)
        for i in range(8):
            a(f"v_cvt_pk_bf16_f32 v{X+i}, v{DV+2*i}, v{DV+2*i+1}")
        for i in range(8):
            unpack(f"v{DV+2*i}", f"v{DV+2*i+1}", f"v{X+i}")
        for i in range(16):
            a(f"v_mul_f32 v{XF+i}, v{DV+i}, {r_}")
        for i in range(16):
            a(f"v_fma_f32 v{DV+i}, -v{XF+i}, {s_}, v{DV+i}")
        for i in range(16):
            a(f"v_fma_f32 v{XF+i}, v{DV+i}, {r_}, v{XF+i}")
        for i in range(8):
            a(f"v_cvt_pk_bf16_f32 v{X+i}, v{XF+2*i}, v{XF+2*i+1}")
        a(f"v_add_u32 {t_}, {ldsoff}, {vV}")
        a(f"ds_write_b128 {t_}, {vq(X)}")
        a(f"ds_write_b128 {t_}, {vq(X+4)} offset:1024")

    a.feed(idx["K0"], P["ln"])
    layernorm(L_XN)
    a.flush(idx["K0"])
    a.feed(idx["K1"], P["ln"])
    layernorm(L_Y)
    a.nofeed()
    a.flush(idx["K1"])
    stamp("ln")
    if "now" not in dbg.split():
        a.wait_vm(tE)
    a(f"s_mov_b32 {sT0}, 1664525")
    a(f"v_mul_lo_u32 {vA}, {vTAG}, {sT0}")
    a(f"v_add_u32 {vA}, 1013904223, {vA}")
    a(f"v_lshrrev_b32 {vB_}, 13, {vA}")
    a(f"v_xor_b32 {vA}, {vA}, {vB_}")
    a(f"v_and_b32 {vA}, 0x7e7e7e7e, {vA}")
    a(f"v_or_b32 {vA}, 0x01010101, {vA}")
    a(f"v_add_u32 {vTAG}, {vTAG}, {vA}")
    vTR1, vBX = "v116", "v117"
    a(f"s_lshl_b32 {sT0}, {sWAVE}, 5")
    a(f"v_add_u32 {vTR1}, {sT0}, {vTR}")
    a(f"v_and_b32 {vA}, 3, {vLANE}")
    a(f"v_lshlrev_b32 {vA}, 11, {vA}")
    a(f"v_add_u32 {vA}, {vA}, {vSQ}")
    a(f"s_lshl_b32 {sT0}, {sKQ}, 9")
    a(f"s_add_u32 {sT0}, {sT0}, {L_XN}")
    a(f"v_add_u32 {vBX}, {sT0}, {vA}")
    a(f"v_add_u32 v118, 32768, {vTR1}")
    a.lgkm(0)
    a("s_barrier")
    stamp("w")
    mats = [(vTR1, 0, 0), (vTR1, L_W1, 1)] + ([("v118", L_W1B - 32768, 1)] if wsplit == 2 else [])
    AW = [V0, V0 + 32, V0 + 64]
    BW = [V0 + 96, S0]
    ACC = [D0, D0 + 4, D0 + 8]
    a.feed(idx["K2"], P["proj"])
    for mi, (vt, lw, bx) in enumerate([] if "noproj" in dbg else mats):
        for ks in range(8):
            for hh in range(2):
                a(f"ds_read_b64_tr_b16 {vq(AW[mi] + 4*ks + 2*hh, 2)}, {vt} offset:{lw + ks*4096 + hh*512}")
            if mi < 2:
                a(f"ds_read_b128 {vq(BW[bx] + 4*ks)}, {vBX} offset:{8192*bx + ks*64}")
            if ks == 3:
                a.lgkm(0)
        a.lgkm(0)
        for ks in range(8):
            c = "0" if ks == 0 else vq(ACC[mi])
            if mi == 0 and qemb:
                a(f"v_mfma_f32_16x16x32_bf16 {vq(ACC[mi])}, {vq(AW[mi] + 4*ks)}, {vq(BW[bx] + 4*ks)}, {c}")
            else:
                a(f"v_mfma_f32_16x16x32_bf16 {vq(ACC[mi])}, {vq(BW[bx] + 4*ks)}, {vq(AW[mi] + 4*ks)}, {c}")
    a.nofeed()
    PB = D0 + 12
    nm = len(mats)
    TB1 = ["v120", "v121", "v122", "v124"]
    tag_bytes(TB1)
    a(f"v_mov_b32 v{PB+1}, {vTAG}")
    a(f"s_lshl_b32 {sT0}, {sKQ}, {15 - qemb}")
    a(f"s_lshl_b32 {sT1}, {sCG}, {9 - qemb}")
    a(f"s_add_u32 {sT0}, {sT0}, {sT1}")
    a(f"s_lshl_b32 {sT1}, {sWAVE}, {7 - qemb}")
    a(f"s_add_u32 {sT0}, {sT0}, {sT1}")
    a(f"s_add_u32 {sT0}, {sT0}, {QP}")
    a(f"s_lshl_b32 {sT1}, {sKQ}, 16")
    a(f"s_lshl_b32 {sT2}, {sCG1}, 10")
    a(f"s_add_u32 {sT1}, {sT1}, {sT2}")
    a(f"s_lshl_b32 {sT2}, {sWAVE}, 8")
    a(f"s_add_u32 {sT1}, {sT1}, {sT2}")
    a(f"s_add_u32 {sT1}, {sT1}, {HP}")
    a(f"s_movk_i32 {sT2}, 0xff")
    if not qemb:
        a(f"v_mov_b32 v{PB}, v{ACC[0]}")
        for r in range(1, 4):
            a(f"v_mov_b32_dpp v{PB}, v{ACC[0] + r} quad_perm:[0,1,2,3] row_mask:{hex(1 << r)} bank_mask:0xf")
    for mi in range(1 - qemb, nm):
        for r in range(4):
            a(f"v_add_u32 v{ACC[mi] + r}, 0x80, v{ACC[mi] + r}")
        for r in range(4):
            a(f"v_bfi_b32 v{ACC[mi] + r}, {sT2}, {TB1[r]}, v{ACC[mi] + r}")
    if qemb:
        a(f"s_mov_b32 exec_lo, 0x000f000f")
        a(f"s_mov_b32 exec_hi, 0x000f000f")
        a(f"buffer_store_dwordx4 {vq(ACC[0])}, {vPUB}, {srd(rWS)}, {sT0} offen sc1")
    else:
        a(f"buffer_store_dwordx2 {vq(PB, 2)}, {vPUB}, {srd(rWS)}, {sT0} offen sc1")
    a(f"s_mov_b64 exec, 0xffff")
    a(f"buffer_store_dwordx4 {vq(ACC[1])}, {vL16}, {srd(rWS)}, {sT1} offen sc1")
    if nm == 3:
        a(f"buffer_store_dwordx4 {vq(ACC[2])}, {vL16}, {srd(rWS)}, {sT1} offen offset:1024 sc1")
    a(f"s_lshl_b32 {sT0}, {sW4C}, 4")
    a(f"s_lshl_b32 {sT1}, {sRG}, 7")
    a(f"s_add_u32 {sT0}, {sT0}, {sT1}")
    a(f"s_add_u32 {sT0}, {sT0}, {RG}")
    a(f"v_mov_b32 v{PB+6}, {sLOC}")
    a(f"v_mov_b32 v{PB+7}, {vTAG}")
    a(f"v_lshlrev_b32 {vA}, 3, {vLANE}")
    if "norg" not in dbg:
        a(f"buffer_store_dwordx2 {vq(PB+6, 2)}, {vA}, {srd(rWS)}, {sT0} offen sc1")
    a(f"s_mov_b64 exec, -1")
    stamp("qpub")
    vLC = "v118"; vT16 = "v119"; vFH = "v123"
    a(f"v_and_b32 {vA}, 15, {vLANE}")
    a(f"v_min_u32 {vA}, 13, {vA}")
    a(f"s_mul_i32 {sT0}, s2, 14")
    a(f"v_add_u32 {vA}, {sT0}, {vA}")
    a(f"v_lshlrev_b32 {vFH}, 4, {vA}")
    a(f"v_lshl_add_u32 {vLC}, {vSQ}, 12, {vFH}")
    a(f"v_lshlrev_b32 {vA}, 1, {vA}")
    a(f"global_load_short_d16_hi {vB1}, {vA}, {sp(pB1)}")
    a(f"v_lshlrev_b32 {vT16}, 4, {vTID}")
    GQ, GH0, GH = S0, S0 + 32, S0 + 36
    NQ = 4 if qemb else 8
    if qemb:
        GH0 = GQ + 16

    def issue_qh(fl, js=range(NQ + 1)):
        t = None
        for j in js:
            if j < NQ:
                a(f"s_add_u32 {sT1}, {sT0}, {j*16384 if qemb else (j >> 1)*32768 + (j & 1)*4096}")
                t = a(f"buffer_load_dwordx4 {vq(GQ + 4*j)}, {vT16}, {srd(rWS)}, {sT1} offen{fl}")
            else:
                t = a(f"buffer_load_dwordx4 {vq(GH0)}, {vLC}, {srd(rWS)}, {sT2} offen{fl}")
        return t

    a(f"s_lshl_b32 {sT0}, {sB}, {17 - qemb}")
    a(f"s_lshl_b32 {sT1}, {sHKV}, {13 - qemb}")
    a(f"s_add_u32 {sT0}, {sT0}, {sT1}")
    a(f"s_add_u32 {sT0}, {sT0}, {QP}")
    a(f"s_mov_b32 {sT2}, {HP}")
    order = [f"K{t}" for t in range(8)] + [f"V{t}" for t in range(8)]
    a.flush(idx[order[gpos - 1]])
    a.room(9)
    if "noq" not in dbg:
        tG = issue_qh(fq)
    a.flush(idx[order[gpos - 1 + gafter]])
    stamp("g_iss")
    if "noq" not in dbg:
      if qemb:
        check_loop("qh", [], issue_qh, tG, emb=TB1, equads=[GQ + 4*i for i in range(5)], clean=GQ + 20)
      else:
        check_loop("qh", [GQ + 4*i for i in range(8)], issue_qh, tG, emb=TB1, equads=[GH0], clean=GH)
    stamp("g_ok")
    base = min(a.fi, idx["V3"] - 8)
    a.feed(base + 8, P["qh"])
    if qemb:
        GQ += 20
        for r in range(4):
            a(f"v_add_f32 v{GQ+r}, v{GQ+r}, v{GQ+4+r}")
            a(f"v_add_f32 v{GQ+8+r}, v{GQ+8+r}, v{GQ+12+r}")
        for r in range(4):
            a(f"v_add_f32 v{GQ+r}, v{GQ+r}, v{GQ+8+r}")
        a(f"v_cvt_pk_bf16_f32 v{GQ}, v{GQ}, v{GQ+1}")
        a(f"v_cvt_pk_bf16_f32 v{GQ+1}, v{GQ+2}, v{GQ+3}")
        a(f"v_lshlrev_b32 {vA}, 3, {vTID}")
        a(f"v_add_u32 {vA}, {L_Q}, {vA}")
        a(f"ds_write_b64 {vA}, {vq(GQ, 2)}")
    else:
        for hf in range(2):
            for c in (0, 2):
                r = GQ + 4*hf + c
                a(f"v_add_f32 v{r}, v{r}, v{r+8}")
                a(f"v_add_f32 v{r+16}, v{r+16}, v{r+24}")
            for c in (0, 2):
                r = GQ + 4*hf + c
                a(f"v_add_f32 v{r}, v{r}, v{r+16}")
            a(f"v_cvt_pk_bf16_f32 v{GQ+4*hf}, v{GQ+4*hf}, v{GQ+4*hf+2}")
        a(f"v_lshlrev_b32 {vA}, 2, {vTID}")
        a(f"v_add_u32 {vA}, {L_Q}, {vA}")
        a(f"ds_write_b32 {vA}, v{GQ}")
        a(f"ds_write_b32 {vA}, v{GQ+4} offset:1024")
    U = [f"v{GH+r}" for r in range(4)]
    T = [f"v{GH+4+r}" for r in range(4)]
    b0 = f"v{GH+8}"
    rows_reduce("v_add_f32", U, T)
    a(f"v_and_b32 {vB1}, 0xffff0000, {vB1}")
    for k in range(2):
        a(f"v_cvt_pk_bf16_f32 {T[k]}, {U[2*k]}, {U[2*k+1]}")
    for k in range(2):
        unpack(U[2*k], U[2*k+1], T[k])
    for u in U:
        a(f"v_add_f32 {u}, {u}, {vB1}")
    for k in range(2):
        a(f"v_cvt_pk_bf16_f32 {T[k]}, {U[2*k]}, {U[2*k+1]}")
    for k in range(2):
        unpack(U[2*k], U[2*k+1], T[k])
    c1 = -2.0 * 0.7978845608028654 * 1.4426950408889634
    c2 = c1 * 0.044715
    a(f"v_mov_b32 {b0}, {f32(c1)}")
    a(f"s_mov_b32 {sT0}, {f32(c2)}")
    UT = list(zip(U, T))
    for (u, t) in UT:
        a(f"v_mul_f32 {t}, {u}, {u}")
    for (u, t) in UT:
        a(f"v_fma_f32 {t}, {t}, {sT0}, {b0}")
    for (u, t) in UT:
        a(f"v_mul_f32 {t}, {u}, {t}")
    for (u, t) in UT:
        a(f"v_exp_f32 {t}, {t}")
    for (u, t) in UT:
        a(f"v_add_f32 {t}, 1.0, {t}")
    for (u, t) in UT:
        a(f"v_rcp_f32 {t}, {t}")
    for (u, t) in UT:
        a(f"v_mul_f32 {t}, {u}, {t}")
    a(f"v_cvt_pk_bf16_f32 {U[0]}, {T[0]}, {T[1]}")
    a(f"v_cvt_pk_bf16_f32 {U[2]}, {T[2]}, {T[3]}")
    a(f"v_mov_b32 {U[1]}, {vTAG}")
    a(f"v_mov_b32 {U[3]}, {vTAG}")
    a(f"s_cmp_eq_u32 {sWAVE}, 0")
    a(f"s_mov_b32 {sT1}, {FH}")
    a(f"s_cselect_b32 {sT0}, {sT1}, 0x7f000000")
    a(f"v_xor_b32 {vW4b}, 0x80, {vW4}")
    a.nofeed()
    a(f"s_mov_b64 exec, 0x3fff")
    a.room(1)
    a(f"buffer_store_dwordx4 {vq(GH)}, {vFH}, {srd(rWS)}, {sT0} offen sc1")
    a(f"s_mov_b64 exec, -1")
    a(f"v_and_b32 {vA}, 7, {vLANE}")
    a(f"v_lshlrev_b32 {vA}, 8, {vA}")
    a(f"v_lshl_add_u32 {vA}, {vSQ}, 1, {vA}")
    a(f"v_bfe_u32 {vC}, {vLANE}, 3, 1")
    a(f"v_lshl_add_u32 {vA}, {vC}, 4, {vA}")
    a(f"v_add_u32 {vA}, {L_Q}, {vA}")
    a.nofeed()
    a.flush(base + 8)
    a.lgkm(0)
    a("s_barrier")
    a(f"ds_read_b128 {vq(Q0)}, {vA}")
    a(f"ds_read_b128 {vq(Q0+4)}, {vA} offset:128")
    a(f"v_mov_b32 {vMX}, 0xff800000")
    a.lgkm(0)

    def qk_mfma(t):
        if "noqk" in dbg:
            return
        d = D0 + 16 * (t & 1)
        wait(f"K{t}")
        for j in range(2):
            for u in range(4):
                c = "0" if j == 0 else vq(d + 4*u)
                a(f"v_mfma_f32_16x16x32_bf16 {vq(d + 4*u)}, {aq(32*t + 8*u + 4*j)}, {vq(Q0 + 4*j)}, {c}")

    def qk_post(t):
        if "nosm" in dbg:
            return
        d = D0 + 16 * (t & 1)
        s = S0 + 8 * t
        for u in range(4):
            for tt in range(2):
                a(f"v_add_f32_dpp v{s + 2*u + tt}, v{d + 4*u + 2*tt + 1}, v{d + 4*u + 2*tt} row_ror:8 row_mask:0xf bank_mask:0xf")
        for u in range(4):
            a(f"v_cvt_pk_bf16_f32 v{T0+u}, v{s+2*u}, v{s+2*u+1}")
        for u in range(4):
            unpack(f"v{s+2*u}", f"v{s+2*u+1}", f"v{T0+u}")
        for i in range(8):
            a(f"v_mul_f32 v{s+i}, {sSCALE}, v{s+i}")
        for u in range(4):
            a(f"v_cvt_pk_bf16_f32 v{T0+u}, v{s+2*u}, v{s+2*u+1}")
        for u in range(4):
            unpack(f"v{s+2*u}", f"v{s+2*u+1}", f"v{T0+u}")
        for u in range(4):
            a(f"v_max3_f32 {vMX}, {vMX}, v{s+2*u}, v{s+2*u+1}")

    a.feed(idx[lqk], P["qk"])
    qk_mfma(0)
    for t in range(8):
        if t < 7:
            if t == 5:
                a.flush(idx[lqk])
            qk_mfma(t + 1)
        qk_post(t)
    stamp("qk")
    a.feed(idx[lexp], P["exp"])
    vNM = f"v{T0+5}"; vL2 = f"v{T0+6}"
    rows_reduce("v_max_f32", [vMX], [vNM])
    a(f"v_mul_f32 {vNM}, {sLOG2E}, {vMX}")
    a(f"v_mov_b32 {vL}, 0")
    a(f"v_mov_b32 {vL2}, 0")
    for t in range(0 if "nosm" in dbg else 8):
        s = S0 + 8 * t
        for i in range(8):
            a(f"v_fma_f32 v{s+i}, v{s+i}, {sLOG2E}, -{vNM}")
        for i in range(8):
            a(f"v_exp_f32 v{s+i}, v{s+i}")
        for u in range(4):
            a(f"v_add_f32 {vL}, {vL}, v{s+2*u}")
            a(f"v_add_f32 {vL2}, {vL2}, v{s+2*u+1}")
        for u in range(4):
            a(f"v_cvt_pk_bf16_f32 v{s+u}, v{s+2*u}, v{s+2*u+1}")
    a(f"v_add_f32 {vL}, {vL}, {vL2}")
    rows_reduce("v_add_f32", [vL], [vL2])
    a(f"s_lshl_b32 {sT0}, {sB}, 2")
    a(f"s_add_u32 {sT0}, {sT0}, {sHKV}")
    a(f"s_lshl_b32 {sMLG}, {sT0}, 13")
    a(f"s_add_u32 {sMLG}, {sMLG}, {ML}")
    a(f"s_lshl_b32 {sT0}, {sS}, 9")
    a(f"s_lshl_b32 {sT1}, {sWAVE}, 7")
    a(f"s_add_u32 {sT0}, {sT0}, {sT1}")
    a(f"s_add_u32 {sT0}, {sT0}, {sMLG}")
    a(f"s_cmp_eq_u32 {sWAVE}, {7 if 'noml' in dbg else 0}")
    a(f"s_cselect_b32 {sMLG}, {sMLG}, 0x7f000000")
    a(f"s_add_u32 {sMLO}, {sMLG}, 4096")
    a(f"v_mov_b32 v{D0}, {vMX}")
    a(f"v_mov_b32 v{D0+1}, {vTAG}")
    a(f"v_mov_b32 v{D0+2}, {vL}")
    a(f"v_mov_b32 v{D0+3}, {vTAG}")
    a.nofeed()
    a(f"s_mov_b64 exec, 0xff")
    a.room(1)
    if "nomls" not in dbg:
        a(f"buffer_store_dwordx4 {vq(D0)}, {vL16}, {srd(rWS)}, {sT0} offen sc1")
    a(f"s_mov_b64 exec, -1")
    a.feed(idx[lexp], P["exp"])
    a(f"s_lshl_b32 {sT0}, {sS}, 9")
    a(f"v_and_b32 {vMW}, 0x1f0, {vL16}")
    a(f"v_add_u32 {vMW}, {sT0}, {vMW}")
    vRW = f"v{T0}"; vRR = f"v{T0+1}"; vOP = f"v{T0+2}"; vOW = f"v{T0+3}"; vFW = f"v{T0+7}"
    a(f"v_lshrrev_b32 {vA}, 7, {vTR}")
    a(f"v_and_b32 {vB_}, 3, {vA}")
    a(f"v_bfe_u32 {vC}, {vA}, 3, 1")
    a(f"v_lshl_or_b32 {vB_}, {vC}, 2, {vB_}")
    a(f"s_lshl_b32 {sT0}, {sWAVE}, 1")
    a(f"v_xor_b32 {vB_}, {sT0}, {vB_}")
    a(f"v_and_b32 {vC}, 0x18, {vTR}")
    a(f"v_lshl_add_u32 {vC}, {vB_}, 5, {vC}")
    a(f"v_lshl_add_u32 {vTR4}, {vA}, 8, {vC}")
    a(f"v_add_u32 {vTR4}, {L_WO}, {vTR4}")
    a(f"v_xor_b32 {vTR5}, 32, {vTR4}")
    a(f"v_and_b32 {vC}, 3, {vLANE}")
    a(f"v_lshlrev_b32 {vC}, 8, {vC}")
    a(f"v_add_u32 {vBO}, {vC}, {vSQ}")
    a(f"v_add_u32 {vBO}, {L_OL}, {vBO}")
    a(f"v_and_b32 {vC}, 7, {vLANE}")
    a(f"v_mul_u32_u24 {vRW}, {RED_H}, {vC}")
    a(f"v_lshl_add_u32 {vRW}, {vSQ}, 3, {vRW}")
    a(f"s_mul_i32 {sT0}, {sWAVE}, {RED_W}")
    a(f"v_add_u32 {vRW}, {sT0}, {vRW}")
    a(f"v_lshrrev_b32 {vC}, 5, {vTID}")
    a(f"v_mul_u32_u24 {vRR}, {RED_H}, {vC}")
    a(f"v_lshlrev_b32 {vMR}, 4, {vC}")
    a(f"v_add_u32 {vMR}, {L_F}, {vMR}")
    a(f"v_lshlrev_b32 {vOP}, 15, {vC}")
    a(f"v_and_b32 {vC}, 31, {vTID}")
    a(f"v_lshl_add_u32 {vRR}, {vC}, 4, {vRR}")
    a(f"v_lshl_add_u32 {vOP}, {vC}, 4, {vOP}")
    a(f"v_and_b32 {vFW}, 0x70, {vL16}")
    a(f"v_bfe_u32 {vC}, {vLANE}, 3, 2")
    a(f"v_lshl_add_u32 {vFW}, {vC}, 2, {vFW}")
    a(f"v_add_u32 {vFW}, {L_F}, {vFW}")
    a(f"v_bfe_u32 {vC}, {vLANE}, 3, 2")
    a(f"v_lshlrev_b32 {vOW}, 6, {vC}")
    a(f"v_and_b32 {vC}, 7, {vLANE}")
    a(f"v_lshl_add_u32 {vOW}, {vC}, 1, {vOW}")
    a(f"s_lshl_b32 {sT0}, {sWAVE}, 8")
    a(f"s_add_u32 {sT0}, {sT0}, {L_OL}")
    a(f"v_add_u32 {vOW}, {sT0}, {vOW}")
    a(f"v_lshrrev_b32 {vC}, 3, {vLANE}")
    a(f"v_and_b32 {vPUB}, 0x70, {vL16}")
    a(f"v_lshl_add_u32 {vPUB}, {vC}, 12, {vPUB}")
    a(f"v_and_b32 {vB2}, 3, {vLANE}")
    a(f"v_lshlrev_b32 {vB2}, 1, {vB2}")
    a(f"s_lshl_b32 {sT0}, {sRG}, 3")
    a(f"s_add_u32 {sT0}, {sT0}, {sW4C}")
    a(f"v_add_u32 {vB2}, {sT0}, {vB2}")
    a(f"v_bfe_u32 {vC}, {vLANE}, 2, 2")
    a(f"v_lshl_add_u32 {vOUT}, {vC}, 11, {vB2}")
    a(f"v_lshrrev_b32 {vC}, 2, {vLANE}")
    a(f"v_and_b32 {vX1}, 0x30, {vL16}")
    a(f"v_lshl_add_u32 {vX1}, {vC}, 7, {vX1}")
    a(f"s_lshl_b32 {sT0}, {sHKV}, 18")
    a(f"s_lshl_b32 {sT1}, {sB}, 13")
    a(f"s_add_u32 {sT0}, {sT0}, {sT1}")
    a(f"s_lshl_b32 {sT1}, {sS}, 9")
    a(f"s_add_u32 {sT0}, {sT0}, {sT1}")
    a(f"s_add_u32 {sOPO}, {sT0}, {OP}")
    a(f"s_lshl_b32 {sT0}, {sRG}, 15")
    a(f"s_lshl_b32 {sT1}, {sWAVE}, 13")
    a(f"s_add_u32 {sT0}, {sT0}, {sT1}")
    a(f"s_add_u32 {sOPG}, {sT0}, {OP}")
    a(f"s_lshl_b32 {sT2}, {sW4C}, 8")
    a(f"s_lshl_b32 {sT0}, {sWAVE}, 14")
    a(f"s_add_u32 {sT2}, {sT2}, {sT0}")
    a(f"s_lshl_b32 {sT0}, {sRG}, 7")
    a(f"s_add_u32 {sT2}, {sT2}, {sT0}")
    a(f"s_add_u32 {sT2}, {sT2}, {ZP}")
    a(f"s_lshl_b32 {sT0}, {sW4C}, 4")
    a(f"s_add_u32 {sT0}, {sT0}, {RG}")
    a(f"v_and_b32 {vC}, 31, {vLANE}")
    a(f"v_lshlrev_b32 {vC}, 7, {vC}")
    a(f"v_add_u32 {vCWA}, {sT0}, {vC}")
    a(f"v_and_b32 {vC}, 31, {vLANE}")
    a(f"v_min_u32 {vC}, 27, {vC}")
    a(f"s_lshl_b32 {sT0}, {sRG}, 2")
    a(f"s_add_u32 {sT0}, {sT0}, {sWAVE}")
    a(f"s_mul_i32 {sT0}, {sT0}, 448")
    a(f"s_add_u32 {sT0}, {sT0}, {FH}")
    a(f"v_lshlrev_b32 {vC}, 4, {vC}")
    a(f"v_add_u32 {vFG}, {sT0}, {vC}")
    a.nofeed()
    stamp("sm")

    def factors():
        a(f"s_cmp_lg_u32 {sWAVE}, {7 if 'noml' in dbg else 0}")
        a(f"s_cbranch_scc1 L_nofac")
        sv = a.vm_done
        check_loop("ml", GM + [GMW], issue_ml, tok["ML"])
        m_, t_, l_ = vA, vB_, vC
        a(f"v_max3_f32 {m_}, v{GM[0]}, v{GM[1]}, v{GM[2]}")
        a(f"v_max3_f32 {t_}, v{GM[3]}, v{GM[4]}, v{GM[5]}")
        a(f"v_max3_f32 {m_}, {m_}, v{GM[6]}, v{GM[7]}")
        a(f"v_max_f32 {m_}, {m_}, {t_}")
        a(f"v_max_f32_dpp {m_}, {m_}, {m_} row_ror:8 row_mask:0xf bank_mask:0xf")
        rows_reduce("v_max_f32", [m_], [t_])
        for j in range(8):
            a(f"v_sub_f32 v{GM[j]}, v{GM[j]}, {m_}")
        a(f"v_sub_f32 {vMX}, v{GMW}, {m_}")
        for j in range(8):
            a(f"v_mul_f32 v{GM[j]}, {sLOG2E}, v{GM[j]}")
        a(f"v_mul_f32 {vMX}, {sLOG2E}, {vMX}")
        for j in range(8):
            a(f"v_exp_f32 v{GM[j]}, v{GM[j]}")
        a(f"v_exp_f32 {vMX}, {vMX}")
        a(f"v_mul_f32 {l_}, v{GM[0]}, v{GM[0]+2}")
        for j in range(1, 8):
            a(f"v_fmac_f32 {l_}, v{GM[j]}, v{GM[j]+2}")
        a(f"v_add_f32_dpp {l_}, {l_}, {l_} row_ror:8 row_mask:0xf bank_mask:0xf")
        rows_reduce("v_add_f32", [l_], [t_])
        a(f"v_rcp_f32 {t_}, {l_}")
        a(f"v_fma_f32 {m_}, -{l_}, {t_}, 1.0")
        a(f"v_fma_f32 {t_}, {m_}, {t_}, {t_}")
        a(f"v_mul_f32 {vMX}, {vMX}, {t_}")
        a(f"ds_write_b32 {vFW}, {vMX}")
        a.label("L_nofac")
        a.vm_done = sv
        a.wait_vm(tok["ML"] + 1)
        a(f"v_xor_b32 {vCW0}, {sLOC}, {vCW0}")
        a(f"v_xor_b32 {vCW1}, {vTAG}, {vCW1}")
        a(f"v_or_b32 {vCW0}, {vCW0}, {vCW1}")
        a(f"v_cmp_ne_u32 vcc, 0, {vCW0}")
        a(f"s_or_b32 {sLOC}, vcc_lo, vcc_hi")
        if "nofh" not in dbg:
            check_loop("fh", [GF], issue_fh, tok["FH"])
        a(f"v_and_b32 {vC}, 31, {vLANE}")
        a(f"v_cmp_gt_u32 vcc, 28, {vC}")
        a(f"s_lshl_b32 {sT0}, {sWAVE}, 6")
        a(f"s_add_u32 {sT0}, {sT0}, {L_HL}")
        a(f"v_lshl_add_u32 {vC}, {vC}, 1, {sT0}")
        a(f"v_cndmask_b32 v{GF}, 0, v{GF}, vcc")
        a(f"v_cndmask_b32 v{GF+2}, 0, v{GF+2}, vcc")
        a(f"ds_write_b16 {vC}, v{GF}")
        a(f"ds_write_b16_d16_hi {vC}, v{GF} offset:256")
        a(f"ds_write_b16 {vC}, v{GF+2} offset:512")
        a(f"ds_write_b16_d16_hi {vC}, v{GF+2} offset:768")
        if not zloc:
            a(f"s_mov_b32 {sLOC}, 1")

    def pv(t):
        if "nopv" in dbg:
            return
        base = V0 + 32 * (t % 4)
        for e in range(8):
            dd = e >> 1
            sel = sSELHI if e & 1 else sSELLO
            for u in range(4):
                a(f"v_perm_b32 v{D0 + 4*e + u}, v{base + 8*u + 4 + dd}, v{base + 8*u + dd}, {sel}")
            if e >= 1:
                ee = e - 1
                c = "0" if t == 0 else aq(4*ee)
                a(f"v_mfma_f32_16x16x32_bf16 {aq(4*ee)}, {vq(D0 + 4*ee)}, {vq(S0 + 8*t)}, {c}")
        c = "0" if t == 0 else aq(28)
        a(f"v_mfma_f32_16x16x32_bf16 {aq(28)}, {vq(D0 + 28)}, {vq(S0 + 8*t)}, {c}")

    idx["WOa"] = idx["W2"] + wo_early
    idx["WOb"] = max(idx["WOa"], idx["WOa"] + wo7)
    idx["W2a"] = min(idx["W2"], idx["V7"] + w2a)
    nxt = ["V3", "V4", "V5", "V6", "V7", "W2a", "WOa", "WOb"]
    a.flush(idx[lexp])
    aft = ["V4", "V5", "V6", "V7"] + nxt[4:] if burst else nxt
    for t in range(8):
        if "novw" not in dbg:
            wait(f"V{t}")
        a.feed(idx[nxt[t]], P["pv"])
        pv(t)
        a.nofeed()
        a.flush(idx[aft[t]])
        if t == vbar:
            a("s_barrier")
        if t == facpos and "noqml" not in dbg:
            factors()
            stamp("fac")
    stamp("pv")
    a(f"s_mov_b32 exec_lo, 0x00ff00ff")
    a(f"s_mov_b32 exec_hi, 0x00ff00ff")
    for e in range(8):
        a(f"ds_write_b128 {vRW}, {aq(4*e)} offset:{L_RED + 16*e}")
    a(f"s_mov_b64 exec, -1")
    R = D0
    TB = ["v44", "v45", "v46", "v47"]
    tag_bytes(TB)
    a(f"s_movk_i32 {sT3}, 0xff")
    a(f"s_add_u32 {sT0}, {sOPG}, 4096")
    a.lgkm(0)
    stamp("red_w")
    a("s_barrier")
    stamp("b5")
    a(f"ds_read_b128 {vq(R+16)}, {vMR}")
    for w in range(4):
        a(f"ds_read_b128 {vq(R + 4*w)}, {vRR} offset:{L_RED + w*RED_W}")
    for w in range(4):
        a.lgkm(0 if stamps else 3 - w)
        for r in range(4):
            if w == 0:
                a(f"v_mul_f32 v{R+r}, v{R+16}, v{R+r}")
            else:
                a(f"v_fmac_f32 v{R+r}, v{R+16+w}, v{R+4*w+r}")
    for r in range(4):
        a(f"v_bfi_b32 v{48+r}, {sT3}, {TB[r]}, v{R+r}")
    a(f"buffer_store_dwordx4 {vq(48)}, {vOP}, {srd(rWS)}, {sOPO} offen sc1")
    stamp("opub")
    GO = V0

    def issue_op(fl, js=range(8)):
        t = None
        for j in js:
            so = sOPG if j < 4 else sT0
            t = a(f"buffer_load_dwordx4 {vq(GO + 4*j)}, {vL16}, {srd(rWS)}, {so} offen offset:{1024*(j&3)}{fl}")
        return t

    GC = V0 + 96
    if opfirst:
        tOP = issue_op(fo)
    a(f"s_lshl_b32 {sT3}, {sWAVE}, 13")
    if opmid:
        a.flush(idx["W2"] + opmid - 1)
        tOP = issue_op(fo)
    a.flush(idx["WO"])
    a(f"s_movk_i32 {sT3}, 0xff")
    if "exit" in dbg:
        a("s_waitcnt vmcnt(0)")
        a.vm_done = a.vm_issued
        stamp("wo")
        a(f"s_cmp_lg_u32 {sWAVE}, 0")
        a(f"s_cbranch_scc1 L_end")
        a(f"s_branch L_stamps")
    NOP = 4 if "halfop" in dbg else 1 if "oneop" in dbg else 8
    if "lateop" not in dbg and not opfirst and not opmid:
        tOP = issue_op(fo, range(NOP))
    AWO, AW2 = 64, 96
    Z = D0
    BH, BO = S0, S0 + 16
    a.wait_vm(tok["W2"])
    a("s_barrier")
    for ks in range(4):
        a(f"ds_read_b128 {vq(BH + 4*ks)}, {vBO} offset:{L_HL - L_OL + 64*ks}")
    for (base, off) in ((AW2, 32768), (AWO, 0)):
        if base == AWO and opmid:
            break
        if base == AWO:
            if opfirst:
                check_loop("op1", [], issue_op, tOP, emb=TB, equads=[GO + 4*j for j in range(NOP)], clean=GC, once=True)
            a.wait_vm(tok["WO"])
            if "exit" not in dbg:
                stamp("wo")
            a("s_barrier")
        for ks in range(4):
            for c in range(2):
                for hh in range(2):
                    a(f"ds_read_b64_tr_b16 {aq(base + 16*c + 4*ks + 2*hh, 2)}, {vTR5 if c else vTR4} offset:{off + ks*8192 + hh*1024}")
            if ks == 1:
                a.lgkm(0)
        if base == AW2:
            a.lgkm(0)
            for ks in range(4):
                for c in range(2):
                    cc = "0" if ks == 0 else vq(Z + 4*c)
                    a(f"v_mfma_f32_16x16x32_bf16 {vq(Z + 4*c)}, {vq(BH + 4*ks)}, {aq(AW2 + 16*c + 4*ks)}, {cc}")
    if "lateop" in dbg:
        tOP = issue_op(fo, range(NOP))
    if "nochk" not in dbg:
      check_loop("op", [], issue_op, tOP, emb=TB, equads=[GO + 4*j for j in range(NOP)], clean=GC)
    GO = GC
    stamp("op_ok")
    O = V0 + 32
    for r in range(4):
        a(f"v_add_f32 v{O+r}, v{GO+r}, v{GO+4+r}")
        a(f"v_add_f32 v{O+4+r}, v{GO+8+r}, v{GO+12+r}")
        a(f"v_add_f32 v{O+8+r}, v{GO+16+r}, v{GO+20+r}")
        a(f"v_add_f32 v{O+12+r}, v{GO+24+r}, v{GO+28+r}")
    for r in range(4):
        a(f"v_add_f32 v{O+r}, v{O+r}, v{O+4+r}")
        a(f"v_add_f32 v{O+8+r}, v{O+8+r}, v{O+12+r}")
    for r in range(4):
        a(f"v_add_f32 v{O+r}, v{O+r}, v{O+8+r}")
    for r in range(4):
        a(f"v_mov_b32 v{O+4+r}, v{O+r}")
    for r in range(4):
        a(f"v_permlane32_swap_b32 v{O+r}, v{O+4+r}")
    for r in range(4):
        a(f"v_add_f32 v{O+r}, v{O+r}, v{O+4+r}")
    a(f"v_cvt_pk_bf16_f32 v{O}, v{O}, v{O+1}")
    a(f"v_cvt_pk_bf16_f32 v{O+2}, v{O+2}, v{O+3}")
    a(f"s_mov_b32 exec_hi, 0")
    a(f"ds_write_b16 {vOW}, v{O}")
    a(f"ds_write_b16_d16_hi {vOW}, v{O} offset:16")
    a(f"ds_write_b16 {vOW}, v{O+2} offset:32")
    a(f"ds_write_b16_d16_hi {vOW}, v{O+2} offset:48")
    a(f"s_mov_b64 exec, -1")
    a.lgkm(0)
    stamp("cmb")
    if opmid:
        a.wait_vm(tok["WO"])
        stamp("wo")
    a("s_barrier")
    stamp("b6")
    for ks in range(4):
        a(f"ds_read_b128 {vq(BO + 4*ks)}, {vBO} offset:{64*ks}")
        if opmid:
            for c in range(2):
                for hh in range(2):
                    a(f"ds_read_b64_tr_b16 {aq(AWO + 16*c + 4*ks + 2*hh, 2)}, {vTR5 if c else vTR4} offset:{ks*8192 + hh*1024}")
            if ks == 2:
                a.lgkm(0 if stamps else 10)
                for c in range(2):
                    a(f"v_mfma_f32_16x16x32_bf16 {vq(Z + 4*c)}, {vq(BO)}, {aq(AWO + 16*c)}, {vq(Z + 4*c)}")
    for ks in range(1 if opmid else 0, 4):
        a.lgkm(0 if stamps else (3 - ks) * (5 if opmid else 1))
        for c in range(2):
            a(f"v_mfma_f32_16x16x32_bf16 {vq(Z + 4*c)}, {vq(BO + 4*ks)}, {aq(AWO + 16*c + 4*ks)}, {vq(Z + 4*c)}")
    ZS = 48
    a(f"s_cmp_eq_u32 {sLOC}, 0")
    for r in range(4):
        a(f"v_mov_b32_dpp v{Z + r}, v{Z + 4 + r} quad_perm:[0,1,2,3] row_mask:0x2 bank_mask:0xf")
    for r in range(4):
        a(f"v_bfi_b32 v{ZS + r}, {sT3}, {TB[r]}, v{Z + r}")
    a(f"s_mov_b32 exec_hi, 0")
    a(f"s_cbranch_scc1 L_zplain")
    a(f"buffer_store_dwordx4 {vq(ZS)}, {vPUB}, {srd(rWS)}, {sT2} offen sc1")
    a(f"s_branch L_zdone")
    a.label("L_zplain")
    a.vm_issued -= 1
    a(f"buffer_store_dwordx4 {vq(ZS)}, {vPUB}, {srd(rWS)}, {sT2} offen")
    a.label("L_zdone")
    a(f"s_mov_b64 exec, -1")
    stamp("zpub")
    a(f"s_cmp_lg_u32 {sWAVE}, 0")
    a(f"s_cbranch_scc1 L_end")
    GZ = V0 + 64
    a(f"s_lshr_b32 {sT0}, {sRG}, 1")
    a(f"s_lshl_b32 {sT0}, {sT0}, 12")
    a(f"s_lshl_b32 {sT1}, {sW4C}, 8")
    a(f"s_add_u32 {sT0}, {sT0}, {sT1}")
    a(f"s_and_b32 {sT1}, {sRG}, 1")
    a(f"s_lshl_b32 {sT1}, {sT1}, 6")
    a(f"s_add_u32 {sT0}, {sT0}, {sT1}")
    a(f"s_add_u32 {sT0}, {sT0}, {ZP}")

    def issue_z(fl, js=range(2)):
        t = None
        for j in js:
            t = a(f"buffer_load_dwordx4 {vq(GZ + 4*j)}, {vX1}, {srd(rWS)}, {sT0} offen offset:{2048*j}{fl}")
        return t

    tZ = issue_z(" sc1")
    x0, b0 = f"v{O}", f"v{O+1}"
    a(f"v_and_b32 {x0}, 0xffff0000, {vX}")
    a(f"v_and_b32 {b0}, 0xffff0000, {vB2}")
    a(f"v_add_f32 {x0}, {x0}, {b0}")
    check_loop("z", [], issue_z, tZ, emb=TB, equads=[GZ + 4*j for j in range(2)], clean=GZ + 8)
    GZ += 8
    stamp("z_ok")
    for r in range(4):
        a(f"v_add_f32 v{GZ+r}, v{GZ+r}, v{GZ+4+r}")
    for b in (4, 8):
        for r in range(4):
            a(f"v_add_f32_dpp v{GZ+r}, v{GZ+r}, v{GZ+r} row_ror:{b} row_mask:0xf bank_mask:0xf")
    for r in range(1, 4):
        a(f"v_mov_b32_dpp v{GZ}, v{GZ+r} quad_perm:[0,1,2,3] row_mask:0xf bank_mask:{hex(1 << r)}")
    rows_reduce("v_add_f32", [f"v{GZ}"], [f"v{GZ+1}"])
    a(f"v_add_f32 {x0}, {x0}, v{GZ}")
    a(f"v_cvt_pk_bf16_f32 {x0}, {x0}, {x0}")
    a(f"s_mov_b64 exec, 0xffff")
    a(f"global_store_short {vOUT}, {x0}, {sp(pOUT)}")
    if stamps:
        a.label("L_stamps")
        stamp("end")
        a.lgkm(0)
        a(f"s_mov_b64 exec, 1")
        a(f"s_mul_i32 {sT0}, s2, {8*len(STAMPS)}")
        a(f"s_add_u32 {sT0}, {sT0}, 0x8000000")
        a(f"v_mov_b32 {vA}, {sT0}")
        for i, (lo, hi) in enumerate(STAMPS):
            a(f"v_mov_b32 v{D0+2*i}, s{lo}")
            a(f"v_mov_b32 v{D0+2*i+1}, s{hi}")
        for i in range(len(STAMPS)):
            a(f"global_store_dwordx2 {vA}, {vq(D0+2*i, 2)}, {sp(pWS)} offset:{8*i}")
    a(f"s_cmp_lg_u32 s2, 0")
    a(f"s_cbranch_scc1 L_end")
    a(f"s_mov_b64 exec, 1")
    a(f"v_mov_b32 {vA}, 0")
    a(f"global_store_dword {vA}, {vTAG}, {sp(pWS)}")
    a.label("L_end")
    a("s_endpgm")
    assert a.fi == len(a.fq)
    a.raw('.section .rodata,"a"')
    a.raw(".p2align 6")
    a.raw(f".amdhsa_kernel {NAME}_kernel")
    a.raw("  .amdhsa_next_free_vgpr 512")
    a.raw("  .amdhsa_next_free_sgpr 102")
    a.raw("  .amdhsa_accum_offset 256")
    a.raw("  .amdhsa_group_segment_fixed_size 0")
    a.raw("  .amdhsa_kernarg_size 104")
    a.raw("  .amdhsa_user_sgpr_count 2")
    a.raw("  .amdhsa_user_sgpr_kernarg_segment_ptr 1")
    a.raw("  .amdhsa_system_sgpr_workgroup_id_x 1")
    a.raw("  .amdhsa_float_denorm_mode_32 3")
    a.raw(".end_amdhsa_kernel")
    return a.text()


if __name__ == "__main__":
    import argparse, json
    ap = argparse.ArgumentParser()
    ap.add_argument("-o", default="cdna_kernels/" + NAME + ".s")
    ap.add_argument("--stamps", default="")
    ap.add_argument("--kw", default="{}", help="json dict of gen() keyword arguments")
    x = ap.parse_args()
    kw = json.loads(x.kw)
    open(x.o, "w").write(gen(stamps=x.stamps.split(",") if x.stamps else None, **kw))
```

```python
import sys, struct
sys.path.insert(0, "dev")
from asmlib import Asm

NAME = "parallel_sum__gqa_block_cached__mixer_channel_mlp__decode"
HEADER = open("cdna_kernels/" + NAME + ".s.ref").read().split("; Override launch")[0]


def f32(x):
    return "0x%08x" % struct.unpack("<I", struct.pack("<f", x))[0]


QP, HP, FH, OP, ML, RG, ZP, WS_SIZE = 0x100000, 0x180000, 0x1c0000, 0x200000, 0x300000, 0x340000, 0x400000, 0x600000
L_WQ, L_W1, L_WO, L_W2 = 0, 32768, 65536, 98304
L_W1B = L_WO
L_RED = 0
L_XN, L_Y, L_Q, L_F, L_OL, L_HL = 131072, 139264, 147456, 149504, 149760, 150784
LDS_BYTES = 151808
RED_W, RED_H = 4224, 528

sWAVE = "s3"
pX, pK, pV, pWQ, pWO, pW1, pB1, pW2, pB2, pOUT, pWS = 16, 18, 20, 22, 24, 28, 30, 32, 34, 36, 40
sF0, sF1 = "s26", "s27"
sROT, sU, sQT, sKQ1 = "s38", "s86", "s88", "s43"
sCG1, sMLO, sLOC = "s0", "s1", "s80"
sOPO, sOPG = "s42", "s43"
rK, rV, rWQ, rW1, rWO, rW2, rWS = 44, 48, 52, 56, 60, 64, 68
sT0, sT1, sB, sHKV, sS, sKQ, sCG, sRG, sCG4 = ["s%d" % i for i in range(72, 81)]
sSELLO, sSELHI, sSCALE, sLOG2E, sT2 = "s81", "s82", "s83", "s84", "s85"
sMLG, sW4C = "s86", "s87"
sCNT, sT3 = "s88", "s89"
STAMPS = [(4, 5), (6, 7), (8, 9), (10, 11), (12, 13), (14, 15), (90, 91), (92, 93), (94, 95), (96, 97), (98, 99), (100, 101)]
vTID, vLANE, vK, vV, vL16, vTAG, vTR, vPUB, vB1, vW4, vSQ, vMX, vL = ["v%d" % i for i in range(13)]
vA, vB_, vC = "v13", "v14", "v15"
vX, vX1, vB2, vOUT, vTR5, vTR4, vBO, vMR = ["v%d" % i for i in range(16, 24)]
Q0 = 16
D0 = 24
T0 = 56
S0 = 64
V0 = 128


def srd(r):
    return f"s[{r}:{r+3}]"


def sp(r):
    return f"s[{r}:{r+1}]"


def vq(r, n=4):
    return f"v[{r}:{r+n-1}]"


def aq(r, n=4):
    return f"a[{r}:{r+n-1}]"


def gen(nt=" nt", wnt=" nt", stamps=None, limit=1 << 14, xaff=1, fq="", fo="", wsplit=3, dbg="", masked=2, slp=0, gpos=6,
        per=None, zloc=1, mlpos=5, facpos=4, wo_early=-3, wo7=0, w2a=0, qemb=0, gafter=2, lqk='V1', lexp='V2', burst=0, opfirst=0, opmid=0, vbar=5, kvmap='g4', rotm=5, vrot=0, quota=(2, 1, 2, 1, 0, 0, 1, 1)):
    a = Asm()
    if "nost" in dbg or "nobar" in dbg:
        class A2(Asm):
            def __call__(self, text):
                if "nost" in dbg and text.startswith("buffer_store"):
                    return self.vm_issued - 1
                if "nobar" in dbg and text.startswith("s_barrier"):
                    return None
                return Asm.__call__(self, text)
        a = A2()
    P = dict(ln=22, proj=10, qh=10, qk=40, exp=30, pv=5)
    P.update(per or {})

    def stamp(name):
        if stamps and name in stamps:
            lo, hi = STAMPS[stamps.index(name)]
            a(f"s_memrealtime s[{lo}:{hi}]")

    def rows_reduce(op, regs, tmps):
        for sw in ("v_permlane16_swap_b32", "v_permlane32_swap_b32"):
            for v, t in zip(regs, tmps):
                a(f"v_mov_b32 {t}, {v}")
            for v, t in zip(regs, tmps):
                a(f"{sw} {v}, {t}")
            for v, t in zip(regs, tmps):
                a(f"{op} {v}, {v}, {t}")

    def allreduce(op, v, t):
        for b in (8, 4, 2, 1):
            a(f"{op}_dpp {v}, {v}, {v} row_ror:{b} row_mask:0xf bank_mask:0xf")
        rows_reduce(op, [v], [t])

    def rne(dst, src):
        a(f"v_cvt_pk_bf16_f32 {dst}, {src}, {src}")
        a(f"v_lshlrev_b32 {dst}, 16, {dst}")

    def unpack(lo, hi, pk):
        a(f"v_lshlrev_b32 {lo}, 16, {pk}")
        a(f"v_and_b32 {hi}, 0xffff0000, {pk}")

    def check_loop(name, quads, issue, tok, emb=None, equads=(), clean=None, once=False):
        a(f"s_mov_b32 {sCNT}, 0")
        a.wait_vm(tok)
        stamp("first_" + name)
        a.label(f"L_chk_{name}")
        mn, mx = vA, vB_
        if equads:
            for qi, q in enumerate(equads):
                for k in range(4):
                    a(f"v_xor_b32 v{clean + 4*qi + k}, v{q+k}, {emb[k]}")
            regs = [f"v{clean + i}" for i in range(4 * len(equads))]
            acc = [mn, mx]
            a(f"v_or_b32 {mn}, {regs[0]}, {regs[1]}")
            a(f"v_or_b32 {mx}, {regs[2]}, {regs[3]}")
            for i in range(4, len(regs), 2):
                a(f"v_or3_b32 {acc[(i >> 1) & 1]}, {acc[(i >> 1) & 1]}, {regs[i]}, {regs[i+1]}")
            a(f"v_or_b32 {mn}, {mn}, {mx}")
            a(f"v_and_b32 {mn}, 0xff, {mn}")
        for qi, q in enumerate(quads):
            for k in (1, 3):
                if not equads and qi == 0 and k == 1:
                    a(f"v_xor_b32 {mn}, v{q+k}, {vTAG}")
                else:
                    a(f"v_bitop3_b32 {mn}, {mn}, v{q+k}, {vTAG} bitop3:0xf6")
        a(f"v_cmp_ne_u32 vcc, 0, {mn}")
        a(f"s_cbranch_vccz L_ok_{name}")
        if not once:
            a(f"s_add_u32 {sCNT}, {sCNT}, 1")
            a(f"s_cmp_gt_u32 {sCNT}, {limit}")
            a(f"s_cbranch_scc1 L_ok_{name}")
        sv = (a.vm_issued, a.vm_done)
        if a.vm_issued - a.vm_done > 40:
            a.vm_done = a.vm_issued - 40
            a("s_waitcnt vmcnt(40)")
        if equads and not quads:
            for qi, q in enumerate(equads):
                c = clean + 4 * qi
                a(f"v_or3_b32 {mn}, v{c}, v{c+1}, v{c+2}")
                a(f"v_or_b32 {mn}, {mn}, v{c+3}")
                a(f"v_and_b32 {mn}, 0xff, {mn}")
                a(f"v_cmp_ne_u32 vcc, 0, {mn}")
                a(f"s_cbranch_vccz L_skip_{name}{qi}")
                a("s_mov_b64 exec, vcc")
                issue(" sc1", [qi])
                a("s_mov_b64 exec, -1")
                a.label(f"L_skip_{name}{qi}")
        else:
            a("s_mov_b64 exec, vcc")
            issue(" sc1")
            a("s_mov_b64 exec, -1")
        if slp and name == "op":
            a(f"s_sleep {slp}")
        if once:
            a.label(f"L_ok_{name}")
            a("s_waitcnt vmcnt(0)")
            a.vm_issued = sv[0]
            a.vm_done = sv[0]
            return
        a("s_waitcnt vmcnt(0)")
        a.vm_issued, a.vm_done = sv
        a(f"s_branch L_chk_{name}")
        a.label(f"L_ok_{name}")
        if stamps and ("cnt_" + name) in stamps:
            lo, hi = STAMPS[stamps.index("cnt_" + name)]
            a(f"s_mov_b32 s{lo}, {sCNT}")
            a(f"s_mov_b32 s{hi}, 0")

    def tag_bytes(regs):
        for k in range(4):
            a(f"v_bfe_u32 {regs[k]}, {vTAG}, {8*k}, 8")

    a.raw(HEADER.rstrip())
    a.raw(f"; @launch grid=(256,1,1) block=(256,1,1) lds={LDS_BYTES}")
    a.raw('.amdgcn_target "amdgcn-amd-amdhsa--gfx950"')
    a.raw(".text")
    a.raw(f".globl {NAME}_kernel")
    a.raw(".p2align 8")
    a.raw(f".type {NAME}_kernel,@function")
    a.raw(f"{NAME}_kernel:")
    a("s_cmp_ge_u32 s2, 256")
    a("s_cbranch_scc1 L_end")
    a("s_load_dwordx16 s[16:31], s[0:1], 0")
    a("s_load_dwordx8 s[32:39], s[0:1], 64")
    a("s_load_dwordx2 s[40:41], s[0:1], 96")
    stamp("start")
    vW = "v56"; vW1 = "v57"; vPF = "v58"; vZ = "v59"
    a(f"s_getpc_b64 s[42:43]")
    a.label("L_pc")
    a(f"v_lshlrev_b32 {vPF}, 7, {vTID}")
    a(f"v_min_u32 {vPF}, L_end-L_pc, {vPF}")
    if "nopf" not in dbg:
        a(f"global_load_dword {vPF}, {vPF}, s[42:43]")
    a(f"v_lshrrev_b32 {vA}, 6, {vTID}")
    a(f"v_and_b32 {vLANE}, 63, {vTID}")
    a(f"v_readfirstlane_b32 {sWAVE}, {vA}")
    a(f"v_lshlrev_b32 {vL16}, 4, {vLANE}")
    a(f"v_lshl_add_u32 {vV}, {vA}, 11, {vL16}")
    a(f"s_bfe_u32 {sKQ}, s2, 0x20001")
    a(f"s_and_b32 {sCG}, s2, 1")
    a(f"s_lshl_b32 {sCG}, {sCG}, 5")
    a(f"s_lshr_b32 {sT0}, s2, 3")
    a(f"s_add_u32 {sCG}, {sCG}, {sT0}")
    a(f"v_lshrrev_b32 {vB_}, 3, {vTID}")
    a(f"v_and_b32 {vC}, 7, {vB_}")
    a(f"v_lshl_add_u32 {vB_}, {vA}, 6, {vC}")
    a(f"s_lshl_b32 {sT0}, {sKQ}, 8")
    a(f"v_add_u32 {vB_}, {sT0}, {vB_}")
    a(f"v_and_b32 {vC}, 0x70, {vL16}")
    a(f"v_lshl_add_u32 {vW}, {vB_}, 13, {vC}")
    if wsplit == 3:
        units, nxt_u = {}, 0
        for x in sorted(range(8), key=lambda x: -quota[x]):
            units[x] = nxt_u if quota[x] else 0
            nxt_u += quota[x]
        assert nxt_u == 8
        UT = sum(units[x] << (4 * x) for x in range(8))
        QT = sum(quota[x] << (4 * x) for x in range(8))
        a(f"s_and_b32 {sT1}, s2, 7")
        a(f"s_lshl_b32 {sT1}, {sT1}, 2")
        a(f"s_lshr_b32 {sU}, {hex(UT)}, {sT1}")
        a(f"s_lshr_b32 {sQT}, {hex(QT)}, {sT1}")
        a(f"s_bfe_u32 {sKQ1}, {sU}, 0x20001")
        a(f"s_sub_u32 {sT1}, {sKQ1}, {sKQ}")
        a(f"s_lshl_b32 {sT1}, {sT1}, 8")
        a(f"v_add_u32 {vB_}, {sT1}, {vB_}")
    a(f"v_mul_u32_u24 {vW1}, 7168, {vB_}")
    a(f"v_add_u32 {vW1}, {vW1}, {vC}")
    a(f"v_mov_b32 {vZ}, 0")
    a(f"s_lshl_b32 {sT2}, {sCG}, 7")
    a(f"s_lshl_b32 {sT3}, {sWAVE}, 13")
    a(f"s_mov_b32 s{rWQ+2}, 0x800000")
    a(f"s_mov_b32 s{rWQ+3}, 0x20000")
    a(f"s_mov_b32 s{rW1+3}, 0x20000")
    a.lgkm(0)
    X = S0
    a(f"global_load_dwordx4 {vq(X)}, {vV}, {sp(pX)}")
    tX = a(f"global_load_dwordx4 {vq(X+4)}, {vV}, {sp(pX)} offset:1024")
    a(f"s_mov_b64 s[{rWQ}:{rWQ+1}], {sp(pWQ)}")
    a(f"s_mov_b64 s[{rW1}:{rW1+1}], {sp(pW1)}")
    for j in range(8):
        a(f"s_add_u32 m0, {sT3}, {L_WQ + j*1024}")
        a(f"s_add_u32 {sT1}, {sT2}, {j*8*8192}")
        a(f"buffer_load_dwordx4 {vW}, {srd(rWQ)}, {sT1} offen{wnt} lds")
    if wsplit == 3:
        a(f"s_lshr_b32 {sT1}, s2, 3")
        a(f"s_lshr_b32 {sT0}, s2, 6")
        a(f"s_sub_u32 {sCG1}, {sT1}, {sT0}")
        a(f"s_and_b32 {sT0}, {sT1}, 7")
        a(f"s_cmp_gt_u32 {sT0}, 3")
        a(f"s_subb_u32 {sCG1}, {sCG1}, 0")
        a(f"s_lshl_b32 {sCG1}, {sCG1}, 1")
        a(f"s_and_b32 {sT1}, {sU}, 1")
        a(f"s_add_u32 {sCG1}, {sCG1}, {sT1}")
        a(f"s_and_b32 {sQT}, {sQT}, 3")
        a(f"s_cmp_eq_u32 {sT0}, 3")
        a(f"s_cselect_b32 {sQT}, 0, {sQT}")
        a(f"s_cmp_gt_u32 {sQT}, 0")
        a(f"s_cselect_b32 s{rW1+2}, 0x700000, 0")
        a(f"s_cselect_b32 {sCG1}, {sCG1}, 60")
    elif wsplit == 0:
        a(f"s_mov_b32 {sCG1}, {sCG}")
        a(f"s_cmp_lt_u32 {sCG}, 56")
        a(f"s_cselect_b32 s{rW1+2}, 0x700000, 0")
    else:
        a(f"s_lshr_b32 {sT0}, {sCG}, 3")
        a(f"s_sub_u32 {sCG1}, {sCG}, {sT0}")
        a(f"s_and_b32 {sT0}, {sCG}, 7")
        a(f"s_cmp_gt_u32 {sT0}, 3")
        a(f"s_subb_u32 {sCG1}, {sCG1}, 0")
        if wsplit == 2:
            a(f"s_lshl_b32 {sCG1}, {sCG1}, 1")
            a(f"s_and_b32 {sT1}, s2, 1")
            a(f"s_cselect_b32 {sT0}, 3, {sT0}")
        a(f"s_cmp_lg_u32 {sT0}, 3")
        a(f"s_cselect_b32 s{rW1+2}, 0x700000, 0")
        a(f"s_cselect_b32 {sCG1}, {sCG1}, 60")
    a(f"s_lshl_b32 {sT2}, {sCG1}, 7")
    W1IM = [L_W1, L_W1B] if wsplit >= 2 else [L_W1]
    for k, lb in enumerate(W1IM):
        if k == 1 and wsplit == 3:
            a(f"s_cmp_gt_u32 {sQT}, 1")
            a(f"s_cselect_b32 s{rW1+2}, 0x700000, 0")
        for j in range(8):
            a(f"s_add_u32 m0, {sT3}, {lb + j*1024}")
            a(f"s_add_u32 {sT1}, {sT2}, {j*8*7168 + 128*k}")
            tW = a(f"buffer_load_dwordx4 {vW1}, {srd(rW1)}, {sT1} offen{wnt} lds")
    tE = a(f"global_load_dword {vTAG}, {vZ}, {sp(pWS)}")
    stamp("w_iss")
    a(f"v_bfe_u32 {vB_}, {vLANE}, 2, 2")
    a(f"v_bfe_u32 {vC}, {vLANE}, 1, 1")
    a(f"v_lshl_add_u32 {vB_}, {vC}, 2, {vB_}")
    a(f"v_lshlrev_b32 {vK}, 8, {vB_}")
    WSH = {"t2": 11, "t4": 12, "t8": 13, "g4": 12, "g2": 11}[kvmap]
    a(f"v_lshl_add_u32 {vK}, {vA}, {WSH}, {vK}")
    a(f"v_lshrrev_b32 {vB_}, 4, {vLANE}")
    a(f"v_lshl_add_u32 {vK}, {vB_}, 5, {vK}")
    a(f"v_and_b32 {vC}, 1, {vLANE}")
    a(f"v_lshl_add_u32 {vK}, {vC}, 4, {vK}")
    if xaff:
        a(f"s_and_b32 {sT0}, s2, 7")
        a(f"s_lshl_b32 {sT0}, {sT0}, 1")
        a(f"s_bfe_u32 {sT1}, s2, 0x10003")
        a(f"s_add_u32 {sT0}, {sT0}, {sT1}")
        a(f"s_lshr_b32 {sB}, {sT0}, 2")
        a(f"s_and_b32 {sHKV}, {sT0}, 3")
        a(f"s_lshr_b32 {sS}, s2, 4")
        if kvmap[0] == "g":
            a(f"s_mul_i32 {sROT}, {sT0}, {rotm}")
            a(f"s_lshl_b32 {sT0}, {sT0}, 22")
            a(f"s_lshl_b32 {sT1}, {sS}, {WSH + 2}")
            a(f"s_add_u32 {sT0}, {sT0}, {sT1}")
        else:
            a(f"s_lshl_b32 {sT0}, {sT0}, 4")
            a(f"s_add_u32 {sT0}, {sT0}, {sS}")
            a(f"s_lshl_b32 {sT0}, {sT0}, 18")
    else:
        a(f"s_lshr_b32 {sB}, s2, 6")
        a(f"s_bfe_u32 {sHKV}, s2, 0x20004")
        a(f"s_and_b32 {sS}, s2, 15")
        a(f"s_lshl_b32 {sT0}, s2, 18")
    a(f"s_add_u32 s{rK}, s{pK}, {sT0}")
    a(f"s_addc_u32 s{rK+1}, s{pK+1}, 0")
    a(f"s_add_u32 s{rV}, s{pV}, {sT0}")
    a(f"s_addc_u32 s{rV+1}, s{pV+1}, 0")
    a(f"s_lshr_b32 {sRG}, s2, 3")
    a(f"s_getreg_b32 {sLOC}, hwreg(HW_REG_XCC_ID, 0, 4)")
    for r in (rK, rV, rWO, rW2, rWS):
        a(f"s_mov_b32 s{r+3}, 0x20000")
    if kvmap[0] == "g":
        a(f"s_sub_u32 s{rK+2}, 0x400000, {sT1}")
        a(f"s_mov_b32 s{rV+2}, s{rK+2}")
    else:
        a(f"s_mov_b32 s{rK+2}, 0x40000")
        a(f"s_mov_b32 s{rV+2}, 0x40000")
    a(f"s_mov_b32 s{rWO+2}, 0x800000")
    a(f"s_mov_b32 s{rW2+2}, 0x700000")
    a(f"s_mov_b32 s{rWS+2}, {WS_SIZE}")
    for (r, p) in ((rWO, pWO), (rW2, pW2), (rWS, pWS)):
        a(f"s_mov_b64 s[{r}:{r+1}], {sp(p)}")

    vVV = vV
    tok = {}
    idx = {}

    def q_tile(kind, t):
        for u in range(4):
            for j in range(2):
                def f(u=u, j=j):
                    im = 0
                    if kvmap == "t2":
                        if j == 0:
                            a(f"s_mov_b32 {sF0}, {t*32768 + u*8192}")
                    elif kvmap == "t4":
                        im = (u & 1) * 2048
                        if j == 0 and not u & 1:
                            a(f"s_mov_b32 {sF0}, {t*32768 + (u >> 1)*16384}")
                    elif kvmap == "t8":
                        im = (u & 1) * 2048
                        if j == 0 and not u & 1:
                            a(f"s_mov_b32 {sF0}, {t*32768 + (u >> 1)*4096}")
                    elif kvmap == "g4":
                        im = (u & 1) * 2048
                        if j == 0 and not u & 1:
                            a(f"s_add_u32 {sF0}, {sROT}, {2*t + (u >> 1)}")
                            a(f"s_and_b32 {sF0}, {sF0}, 15")
                            a(f"s_lshl_b32 {sF0}, {sF0}, 18")
                    elif kvmap == "g2":
                        if j == 0:
                            a(f"s_add_u32 {sF0}, {sROT}, {4*t + u}")
                            a(f"s_and_b32 {sF0}, {sF0}, 31")
                            a(f"s_lshl_b32 {sF0}, {sF0}, 17")
                    if kind == "K":
                        tok[f"K{t}"] = a(f"buffer_load_dwordx4 {aq(32*t + 8*u + 4*j)}, {vK}, {srd(rK)}, {sF0} offen offset:{im + j*128}{nt}")
                    else:
                        tok[f"V{t}"] = a(f"buffer_load_dwordx4 {vq(V0 + 32*(t % 4) + 8*u + 4*j)}, {vVV}, {srd(rV)}, {sF0} offen offset:{im + j*1024}{nt}")
                a.fq.append(f)
        idx[f"{kind}{t}"] = len(a.fq)

    def q_w(name, r, lb, rows):
        for j in range(rows // 4):
            def f(j=j):
                if j == 0:
                    a(f"s_lshl_b32 {sF1}, {sRG}, 2")
                    a(f"s_add_u32 {sF1}, {sF1}, {sWAVE}")
                    a(f"s_mul_i32 {sF1}, {sF1}, {rows*2048}")
                    if "rotw" in dbg:
                        a(f"s_lshl_b32 {sF0}, {sRG}, 8")
                        a(f"s_add_u32 {sF0}, {sF0}, {sW4C}")
                        a(f"s_and_b32 {sF0}, {sF0}, 0x7ff")
                        a(f"s_add_u32 {sF1}, {sF1}, {sF0}")
                    else:
                        a(f"s_add_u32 {sF1}, {sF1}, {sW4C}")
                a(f"s_add_u32 m0, {sT3}, {lb + j*1024}")
                a(f"s_add_u32 {sF0}, {sF1}, {j*8192}")
                tok[name] = a(f"buffer_load_dwordx4 {vW4b if j & 2 else vW4}, {srd(r)}, {sF0} offen{wnt} lds")
            a.fq.append(f)
        idx[name] = len(a.fq)

    GM = [S0 + 8*t + 4 for t in range(8)]
    vW4b, vCW0, vCW1, vCWA = vB1, "v60", "v61", "v62"

    GMO = 52

    def issue_ml(fl, js=range(9)):
        t = None
        for j in js:
            if j == 8:
                t = a(f"buffer_load_dwordx4 {vq(GMW)}, {vMW}, {srd(rWS)}, {sMLG} offen{fl}")
                continue
            so = sMLG if j < 4 else sMLO
            t = a(f"buffer_load_dwordx4 {vq(GM[j])}, {vL16}, {srd(rWS)}, {so} offen offset:{1024*(j&3)}{fl}")
        return t

    GMW, vMW = S0, vL

    def q_ml():
        for j in range(9):
            def f(j=j):
                tok["ML"] = issue_ml(" sc1", [j])
            a.fq.append(f)
        a.fq.append(lambda: a(f"buffer_load_dwordx2 v[60:61], {vCWA}, {srd(rWS)}, 0 offen sc1"))
        a.fq.append(lambda: tok.__setitem__("FH", issue_fh(" sc1")))
        idx["ML"] = len(a.fq)

    GF, vFG = S0 + 8, vK

    def issue_fh(fl):
        return a(f"buffer_load_dwordx4 {vq(GF)}, {vFG}, {srd(rWS)}, 0 offen{fl}")

    for t in range(8):
        q_tile("K", t)
    for t in range(8):
        if t == mlpos and "noqml" not in dbg:
            q_ml()
        q_tile("V", t)
    a.fq.append(lambda: a(f"global_load_short_d16_hi {vX}, {vOUT}, {sp(pX)}"))
    a.fq.append(lambda: a(f"global_load_short_d16_hi {vB2}, {vB2}, {sp(pB2)}"))
    q_w("W2", rW2, L_W2, 28)
    q_w("WO", rWO, L_WO, 32)

    def wait(name):
        a.flush(idx[name])
        a.wait_vm(tok[name])

    a(f"s_mov_b32 {sSELLO}, 0x05040100")
    a(f"s_mov_b32 {sSELHI}, 0x07060302")
    a(f"s_mov_b32 {sSCALE}, {f32(128 ** -0.5)}")
    a(f"s_mov_b32 {sLOG2E}, {f32(1.4426950408889634)}")
    a(f"v_lshrrev_b32 {vA}, 4, {vLANE}")
    a(f"v_lshlrev_b32 {vSQ}, 4, {vA}")
    a(f"v_bfe_u32 {vB_}, {vLANE}, 2, 2")
    a(f"v_lshl_add_u32 {vB_}, {vA}, 3, {vB_}")
    a(f"v_and_b32 {vC}, 3, {vLANE}")
    a(f"v_lshlrev_b32 {vC}, 3, {vC}")
    a(f"v_lshl_add_u32 {vTR}, {vB_}, 7, {vC}")
    a(f"v_and_b32 {vB_}, 15, {vLANE}")
    if qemb:
        a(f"v_lshl_add_u32 {vPUB}, {vB_}, 16, {vSQ}")
    else:
        a(f"v_lshlrev_b32 {vB_}, 3, {vB_}")
        a(f"v_lshl_add_u32 {vPUB}, {vA}, 17, {vB_}")
    a(f"v_and_b32 {vB_}, 0xf0, {vL16}")
    a(f"v_lshlrev_b32 {vC}, 5, {vA}")
    a(f"v_xor_b32 {vB_}, {vB_}, {vC}")
    a(f"v_lshl_add_u32 {vW4}, {vA}, 11, {vB_}")
    a(f"s_and_b32 {sW4C}, s2, 7")
    a(f"s_lshl_b32 {sW4C}, {sW4C}, 8")
    for i in range(4):
        a(f"v_mov_b32 v{D0+i}, 0")
    a(f"v_add_u32 {vA}, {sT3}, {vL16}")
    a(f"v_add_u32 {vA}, {L_W2 + 7168}, {vA}")
    a(f"ds_write_b128 {vA}, {vq(D0)}")

    XF = S0 + 16
    DV = S0 + 32
    a.wait_vm(tX)
    stamp("x")

    def layernorm(ldsoff):
        if "noln" in dbg:
            return
        s_, m_, r_, t_ = "v112", "v113", "v114", "v115"
        for i in range(8):
            unpack(f"v{XF+2*i}", f"v{XF+2*i+1}", f"v{X+i}")
        for i in range(8):
            a(f"v_add_f32 v{DV+i}, v{XF+2*i}, v{XF+2*i+1}")
        for i in range(4):
            a(f"v_add_f32 v{DV+i}, v{DV+i}, v{DV+4+i}")
        a(f"v_add_f32 v{DV}, v{DV}, v{DV+2}")
        a(f"v_add_f32 v{DV+1}, v{DV+1}, v{DV+3}")
        a(f"v_add_f32 {m_}, v{DV}, v{DV+1}")
        allreduce("v_add_f32", m_, t_)
        a(f"v_mul_f32 {m_}, {f32(1.0/1024)}, {m_}")
        for i in range(16):
            a(f"v_sub_f32 v{DV+i}, v{XF+i}, {m_}")
        a(f"v_mul_f32 {s_}, v{DV}, v{DV}")
        a(f"v_mul_f32 {r_}, v{DV+1}, v{DV+1}")
        for i in range(2, 16, 2):
            a(f"v_fmac_f32 {s_}, v{DV+i}, v{DV+i}")
            a(f"v_fmac_f32 {r_}, v{DV+i+1}, v{DV+i+1}")
        a(f"v_add_f32 {s_}, {s_}, {r_}")
        allreduce("v_add_f32", s_, t_)
        a(f"v_mul_f32 {s_}, {f32(1.0/1024)}, {s_}")
        rne(m_, m_)
        rne(s_, s_)
        a(f"v_add_f32 {s_}, {f32(1e-5)}, {s_}")
        rne(s_, s_)
        a(f"v_sqrt_f32 {s_}, {s_}")
        rne(s_, s_)
        a(f"v_rcp_f32 {r_}, {s_}")
        for i in range(16):
            a(f"v_sub_f32 v{DV+i}, v{XF+i}, {m_}")
        a.lgkm(0)
        for i in range(8):
            a(f"v_cvt_pk_bf16_f32 v{X+i}, v{DV+2*i}, v{DV+2*i+1}")
        for i in range(8):
            unpack(f"v{DV+2*i}", f"v{DV+2*i+1}", f"v{X+i}")
        for i in range(16):
            a(f"v_mul_f32 v{XF+i}, v{DV+i}, {r_}")
        for i in range(16):
            a(f"v_fma_f32 v{DV+i}, -v{XF+i}, {s_}, v{DV+i}")
        for i in range(16):
            a(f"v_fma_f32 v{XF+i}, v{DV+i}, {r_}, v{XF+i}")
        for i in range(8):
            a(f"v_cvt_pk_bf16_f32 v{X+i}, v{XF+2*i}, v{XF+2*i+1}")
        a(f"v_add_u32 {t_}, {ldsoff}, {vV}")
        a(f"ds_write_b128 {t_}, {vq(X)}")
        a(f"ds_write_b128 {t_}, {vq(X+4)} offset:1024")

    a.feed(idx["K0"], P["ln"])
    layernorm(L_XN)
    a.flush(idx["K0"])
    a.feed(idx["K1"], P["ln"])
    layernorm(L_Y)
    a.nofeed()
    a.flush(idx["K1"])
    stamp("ln")
    if WSH != 11:
        a(f"s_lshl_b32 {sT0}, {sWAVE}, {WSH}")
        a(f"v_add_u32 {vV}, {sT0}, {vL16}")
    if "now" not in dbg.split():
        a.wait_vm(tE)
    a(f"s_mov_b32 {sT0}, 1664525")
    a(f"v_mul_lo_u32 {vA}, {vTAG}, {sT0}")
    a(f"v_add_u32 {vA}, 1013904223, {vA}")
    a(f"v_lshrrev_b32 {vB_}, 13, {vA}")
    a(f"v_xor_b32 {vA}, {vA}, {vB_}")
    a(f"v_and_b32 {vA}, 0x7e7e7e7e, {vA}")
    a(f"v_or_b32 {vA}, 0x01010101, {vA}")
    a(f"v_add_u32 {vTAG}, {vTAG}, {vA}")
    vTR1, vBX = "v116", "v117"
    a(f"s_lshl_b32 {sT0}, {sWAVE}, 5")
    a(f"v_add_u32 {vTR1}, {sT0}, {vTR}")
    a(f"v_and_b32 {vA}, 3, {vLANE}")
    a(f"v_lshlrev_b32 {vA}, 11, {vA}")
    a(f"v_add_u32 {vA}, {vA}, {vSQ}")
    a(f"s_lshl_b32 {sT0}, {sKQ}, 9")
    a(f"s_add_u32 {sT0}, {sT0}, {L_XN}")
    a(f"v_add_u32 {vBX}, {sT0}, {vA}")
    vBY = vBX
    if wsplit == 3:
        vBY = "v125"
        a(f"s_lshl_b32 {sT0}, {sKQ1}, 9")
        a(f"s_add_u32 {sT0}, {sT0}, {L_XN}")
        a(f"v_add_u32 {vBY}, {sT0}, {vA}")
    a(f"v_add_u32 v118, 32768, {vTR1}")
    a.lgkm(0)
    a("s_barrier")
    stamp("w")
    mats = [(vTR1, 0, 0), (vTR1, L_W1, 1)] + ([("v118", L_W1B - 32768, 1)] if wsplit >= 2 else [])
    AW = [V0, V0 + 32, V0 + 64]
    BW = [V0 + 96, S0]
    ACC = [D0, D0 + 4, D0 + 8]
    a.feed(idx["K2"], P["proj"])
    for mi, (vt, lw, bx) in enumerate([] if "noproj" in dbg else mats):
        for ks in range(8):
            for hh in range(2):
                a(f"ds_read_b64_tr_b16 {vq(AW[mi] + 4*ks + 2*hh, 2)}, {vt} offset:{lw + ks*4096 + hh*512}")
            if mi < 2:
                a(f"ds_read_b128 {vq(BW[bx] + 4*ks)}, {vBY if bx else vBX} offset:{8192*bx + ks*64}")
            if ks == 3:
                a.lgkm(0)
        a.lgkm(0)
        for ks in range(8):
            c = "0" if ks == 0 else vq(ACC[mi])
            if mi == 0 and qemb:
                a(f"v_mfma_f32_16x16x32_bf16 {vq(ACC[mi])}, {vq(AW[mi] + 4*ks)}, {vq(BW[bx] + 4*ks)}, {c}")
            else:
                a(f"v_mfma_f32_16x16x32_bf16 {vq(ACC[mi])}, {vq(BW[bx] + 4*ks)}, {vq(AW[mi] + 4*ks)}, {c}")
    a.nofeed()
    PB = D0 + 12
    nm = len(mats)
    TB1 = ["v120", "v121", "v122", "v124"]
    tag_bytes(TB1)
    a(f"v_mov_b32 v{PB+1}, {vTAG}")
    a(f"s_lshl_b32 {sT0}, {sKQ}, {15 - qemb}")
    a(f"s_lshl_b32 {sT1}, {sCG}, {9 - qemb}")
    a(f"s_add_u32 {sT0}, {sT0}, {sT1}")
    a(f"s_lshl_b32 {sT1}, {sWAVE}, {7 - qemb}")
    a(f"s_add_u32 {sT0}, {sT0}, {sT1}")
    a(f"s_add_u32 {sT0}, {sT0}, {QP}")
    a(f"s_lshl_b32 {sT1}, {sKQ1 if wsplit == 3 else sKQ}, 16")
    a(f"s_lshl_b32 {sT2}, {sCG1}, 10")
    a(f"s_add_u32 {sT1}, {sT1}, {sT2}")
    a(f"s_lshl_b32 {sT2}, {sWAVE}, 8")
    a(f"s_add_u32 {sT1}, {sT1}, {sT2}")
    a(f"s_add_u32 {sT1}, {sT1}, {HP}")
    a(f"s_movk_i32 {sT2}, 0xff")
    if not qemb:
        a(f"v_mov_b32 v{PB}, v{ACC[0]}")
        for r in range(1, 4):
            a(f"v_mov_b32_dpp v{PB}, v{ACC[0] + r} quad_perm:[0,1,2,3] row_mask:{hex(1 << r)} bank_mask:0xf")
    for mi in range(1 - qemb, nm):
        for r in range(4):
            a(f"v_add_u32 v{ACC[mi] + r}, 0x80, v{ACC[mi] + r}")
        for r in range(4):
            a(f"v_bfi_b32 v{ACC[mi] + r}, {sT2}, {TB1[r]}, v{ACC[mi] + r}")
    if qemb:
        a(f"s_mov_b32 exec_lo, 0x000f000f")
        a(f"s_mov_b32 exec_hi, 0x000f000f")
        a(f"buffer_store_dwordx4 {vq(ACC[0])}, {vPUB}, {srd(rWS)}, {sT0} offen sc1")
    else:
        a(f"buffer_store_dwordx2 {vq(PB, 2)}, {vPUB}, {srd(rWS)}, {sT0} offen sc1")
    a(f"s_mov_b64 exec, 0xffff")
    a(f"buffer_store_dwordx4 {vq(ACC[1])}, {vL16}, {srd(rWS)}, {sT1} offen sc1")
    if nm == 3:
        if wsplit == 3:
            a(f"s_cmp_gt_u32 {sQT}, 1")
            a(f"s_cselect_b32 {sT1}, {sT1}, 0x7f000000")
        a(f"buffer_store_dwordx4 {vq(ACC[2])}, {vL16}, {srd(rWS)}, {sT1} offen offset:1024 sc1")
    a(f"s_lshl_b32 {sT0}, {sW4C}, 4")
    a(f"s_lshl_b32 {sT1}, {sRG}, 7")
    a(f"s_add_u32 {sT0}, {sT0}, {sT1}")
    a(f"s_add_u32 {sT0}, {sT0}, {RG}")
    a(f"v_mov_b32 v{PB+6}, {sLOC}")
    a(f"v_mov_b32 v{PB+7}, {vTAG}")
    a(f"v_lshlrev_b32 {vA}, 3, {vLANE}")
    if "norg" not in dbg:
        a(f"buffer_store_dwordx2 {vq(PB+6, 2)}, {vA}, {srd(rWS)}, {sT0} offen sc1")
    a(f"s_mov_b64 exec, -1")
    stamp("qpub")
    vLC = "v118"; vT16 = "v119"; vFH = "v123"
    a(f"v_and_b32 {vA}, 15, {vLANE}")
    a(f"v_min_u32 {vA}, 13, {vA}")
    a(f"s_mul_i32 {sT0}, s2, 14")
    a(f"v_add_u32 {vA}, {sT0}, {vA}")
    a(f"v_lshlrev_b32 {vFH}, 4, {vA}")
    a(f"v_lshl_add_u32 {vLC}, {vSQ}, 12, {vFH}")
    a(f"v_lshlrev_b32 {vA}, 1, {vA}")
    a(f"global_load_short_d16_hi {vB1}, {vA}, {sp(pB1)}")
    a(f"v_lshlrev_b32 {vT16}, 4, {vTID}")
    GQ, GH0, GH = S0, S0 + 32, S0 + 36
    NQ = 4 if qemb else 8
    if qemb:
        GH0 = GQ + 16

    def issue_qh(fl, js=range(NQ + 1)):
        t = None
        for j in js:
            if j < NQ:
                a(f"s_add_u32 {sT1}, {sT0}, {j*16384 if qemb else (j >> 1)*32768 + (j & 1)*4096}")
                t = a(f"buffer_load_dwordx4 {vq(GQ + 4*j)}, {vT16}, {srd(rWS)}, {sT1} offen{fl}")
            else:
                t = a(f"buffer_load_dwordx4 {vq(GH0)}, {vLC}, {srd(rWS)}, {sT2} offen{fl}")
        return t

    a(f"s_lshl_b32 {sT0}, {sB}, {17 - qemb}")
    a(f"s_lshl_b32 {sT1}, {sHKV}, {13 - qemb}")
    a(f"s_add_u32 {sT0}, {sT0}, {sT1}")
    a(f"s_add_u32 {sT0}, {sT0}, {QP}")
    a(f"s_mov_b32 {sT2}, {HP}")
    order = [f"K{t}" for t in range(8)] + [f"V{t}" for t in range(8)]
    a.flush(idx[order[gpos - 1]])
    a.room(9)
    if "noq" not in dbg:
        tG = issue_qh(fq)
    a.flush(idx[order[gpos - 1 + gafter]])
    stamp("g_iss")
    if "noq" not in dbg:
      if qemb:
        check_loop("qh", [], issue_qh, tG, emb=TB1, equads=[GQ + 4*i for i in range(5)], clean=GQ + 20)
      else:
        check_loop("qh", [GQ + 4*i for i in range(8)], issue_qh, tG, emb=TB1, equads=[GH0], clean=GH)
    stamp("g_ok")
    base = min(a.fi, idx["V3"] - 8)
    a.feed(base + 8, P["qh"])
    if qemb:
        GQ += 20
        for r in range(4):
            a(f"v_add_f32 v{GQ+r}, v{GQ+r}, v{GQ+4+r}")
            a(f"v_add_f32 v{GQ+8+r}, v{GQ+8+r}, v{GQ+12+r}")
        for r in range(4):
            a(f"v_add_f32 v{GQ+r}, v{GQ+r}, v{GQ+8+r}")
        a(f"v_cvt_pk_bf16_f32 v{GQ}, v{GQ}, v{GQ+1}")
        a(f"v_cvt_pk_bf16_f32 v{GQ+1}, v{GQ+2}, v{GQ+3}")
        a(f"v_lshlrev_b32 {vA}, 3, {vTID}")
        a(f"v_add_u32 {vA}, {L_Q}, {vA}")
        a(f"ds_write_b64 {vA}, {vq(GQ, 2)}")
    else:
        for hf in range(2):
            for c in (0, 2):
                r = GQ + 4*hf + c
                a(f"v_add_f32 v{r}, v{r}, v{r+8}")
                a(f"v_add_f32 v{r+16}, v{r+16}, v{r+24}")
            for c in (0, 2):
                r = GQ + 4*hf + c
                a(f"v_add_f32 v{r}, v{r}, v{r+16}")
            a(f"v_cvt_pk_bf16_f32 v{GQ+4*hf}, v{GQ+4*hf}, v{GQ+4*hf+2}")
        a(f"v_lshlrev_b32 {vA}, 2, {vTID}")
        a(f"v_add_u32 {vA}, {L_Q}, {vA}")
        a(f"ds_write_b32 {vA}, v{GQ}")
        a(f"ds_write_b32 {vA}, v{GQ+4} offset:1024")
    U = [f"v{GH+r}" for r in range(4)]
    T = [f"v{GH+4+r}" for r in range(4)]
    b0 = f"v{GH+8}"
    rows_reduce("v_add_f32", U, T)
    a(f"v_and_b32 {vB1}, 0xffff0000, {vB1}")
    for k in range(2):
        a(f"v_cvt_pk_bf16_f32 {T[k]}, {U[2*k]}, {U[2*k+1]}")
    for k in range(2):
        unpack(U[2*k], U[2*k+1], T[k])
    for u in U:
        a(f"v_add_f32 {u}, {u}, {vB1}")
    for k in range(2):
        a(f"v_cvt_pk_bf16_f32 {T[k]}, {U[2*k]}, {U[2*k+1]}")
    for k in range(2):
        unpack(U[2*k], U[2*k+1], T[k])
    c1 = -2.0 * 0.7978845608028654 * 1.4426950408889634
    c2 = c1 * 0.044715
    a(f"v_mov_b32 {b0}, {f32(c1)}")
    a(f"s_mov_b32 {sT0}, {f32(c2)}")
    UT = list(zip(U, T))
    for (u, t) in UT:
        a(f"v_mul_f32 {t}, {u}, {u}")
    for (u, t) in UT:
        a(f"v_fma_f32 {t}, {t}, {sT0}, {b0}")
    for (u, t) in UT:
        a(f"v_mul_f32 {t}, {u}, {t}")
    for (u, t) in UT:
        a(f"v_exp_f32 {t}, {t}")
    for (u, t) in UT:
        a(f"v_add_f32 {t}, 1.0, {t}")
    for (u, t) in UT:
        a(f"v_rcp_f32 {t}, {t}")
    for (u, t) in UT:
        a(f"v_mul_f32 {t}, {u}, {t}")
    a(f"v_cvt_pk_bf16_f32 {U[0]}, {T[0]}, {T[1]}")
    a(f"v_cvt_pk_bf16_f32 {U[2]}, {T[2]}, {T[3]}")
    a(f"v_mov_b32 {U[1]}, {vTAG}")
    a(f"v_mov_b32 {U[3]}, {vTAG}")
    a.nofeed()
    a(f"s_cmp_eq_u32 {sWAVE}, 0")
    a(f"s_mov_b32 {sT1}, {FH}")
    a(f"s_cselect_b32 {sT0}, {sT1}, 0x7f000000")
    a(f"v_xor_b32 {vW4b}, 0x80, {vW4}")
    a.nofeed()
    a(f"s_mov_b64 exec, 0x3fff")
    a.room(1)
    a(f"buffer_store_dwordx4 {vq(GH)}, {vFH}, {srd(rWS)}, {sT0} offen sc1")
    a(f"s_mov_b64 exec, -1")
    a(f"v_and_b32 {vA}, 7, {vLANE}")
    a(f"v_lshlrev_b32 {vA}, 8, {vA}")
    a(f"v_lshl_add_u32 {vA}, {vSQ}, 1, {vA}")
    a(f"v_bfe_u32 {vC}, {vLANE}, 3, 1")
    a(f"v_lshl_add_u32 {vA}, {vC}, 4, {vA}")
    a(f"v_add_u32 {vA}, {L_Q}, {vA}")
    a.nofeed()
    a.flush(base + 8)
    a.lgkm(0)
    a("s_barrier")
    a(f"ds_read_b128 {vq(Q0)}, {vA}")
    a(f"ds_read_b128 {vq(Q0+4)}, {vA} offset:128")
    a(f"v_mov_b32 {vMX}, 0xff800000")
    a.lgkm(0)

    def qk_mfma(t):
        if "noqk" in dbg:
            return
        d = D0 + 16 * (t & 1)
        wait(f"K{t}")
        for j in range(2):
            for u in range(4):
                c = "0" if j == 0 else vq(d + 4*u)
                a(f"v_mfma_f32_16x16x32_bf16 {vq(d + 4*u)}, {aq(32*t + 8*u + 4*j)}, {vq(Q0 + 4*j)}, {c}")

    def qk_post(t):
        if "nosm" in dbg:
            return
        d = D0 + 16 * (t & 1)
        s = S0 + 8 * t
        for u in range(4):
            for tt in range(2):
                a(f"v_add_f32_dpp v{s + 2*u + tt}, v{d + 4*u + 2*tt + 1}, v{d + 4*u + 2*tt} row_ror:8 row_mask:0xf bank_mask:0xf")
        for u in range(4):
            a(f"v_cvt_pk_bf16_f32 v{T0+u}, v{s+2*u}, v{s+2*u+1}")
        for u in range(4):
            unpack(f"v{s+2*u}", f"v{s+2*u+1}", f"v{T0+u}")
        for i in range(8):
            a(f"v_mul_f32 v{s+i}, {sSCALE}, v{s+i}")
        for u in range(4):
            a(f"v_cvt_pk_bf16_f32 v{T0+u}, v{s+2*u}, v{s+2*u+1}")
        for u in range(4):
            unpack(f"v{s+2*u}", f"v{s+2*u+1}", f"v{T0+u}")
        for u in range(4):
            a(f"v_max3_f32 {vMX}, {vMX}, v{s+2*u}, v{s+2*u+1}")

    a.feed(idx[lqk], P["qk"])
    qk_mfma(0)
    for t in range(8):
        if t < 7:
            if t == 5:
                a.flush(idx[lqk])
            qk_mfma(t + 1)
        qk_post(t)
    stamp("qk")
    a.feed(idx[lexp], P["exp"])
    vNM = f"v{T0+5}"; vL2 = f"v{T0+6}"
    rows_reduce("v_max_f32", [vMX], [vNM])
    a(f"v_mul_f32 {vNM}, {sLOG2E}, {vMX}")
    a(f"v_mov_b32 {vL}, 0")
    a(f"v_mov_b32 {vL2}, 0")
    for t in range(0 if "nosm" in dbg else 8):
        s = S0 + 8 * t
        for i in range(8):
            a(f"v_fma_f32 v{s+i}, v{s+i}, {sLOG2E}, -{vNM}")
        for i in range(8):
            a(f"v_exp_f32 v{s+i}, v{s+i}")
        for u in range(4):
            a(f"v_add_f32 {vL}, {vL}, v{s+2*u}")
            a(f"v_add_f32 {vL2}, {vL2}, v{s+2*u+1}")
        for u in range(4):
            a(f"v_cvt_pk_bf16_f32 v{s+u}, v{s+2*u}, v{s+2*u+1}")
    a(f"v_add_f32 {vL}, {vL}, {vL2}")
    rows_reduce("v_add_f32", [vL], [vL2])
    a(f"s_lshl_b32 {sT0}, {sB}, 2")
    a(f"s_add_u32 {sT0}, {sT0}, {sHKV}")
    a(f"s_lshl_b32 {sMLG}, {sT0}, 13")
    a(f"s_add_u32 {sMLG}, {sMLG}, {ML}")
    a(f"s_lshl_b32 {sT0}, {sS}, 9")
    a(f"s_lshl_b32 {sT1}, {sWAVE}, 7")
    a(f"s_add_u32 {sT0}, {sT0}, {sT1}")
    a(f"s_add_u32 {sT0}, {sT0}, {sMLG}")
    a.nofeed()
    a(f"s_cmp_eq_u32 {sWAVE}, {7 if 'noml' in dbg else 0}")
    a(f"s_cselect_b32 {sMLG}, {sMLG}, 0x7f000000")
    a(f"s_add_u32 {sMLO}, {sMLG}, 4096")
    a(f"v_mov_b32 v{D0}, {vMX}")
    a(f"v_mov_b32 v{D0+1}, {vTAG}")
    a(f"v_mov_b32 v{D0+2}, {vL}")
    a(f"v_mov_b32 v{D0+3}, {vTAG}")
    a.nofeed()
    a(f"s_mov_b64 exec, 0xff")
    a.room(1)
    if "nomls" not in dbg:
        a(f"buffer_store_dwordx4 {vq(D0)}, {vL16}, {srd(rWS)}, {sT0} offen sc1")
    a(f"s_mov_b64 exec, -1")
    a.feed(idx[lexp], P["exp"])
    a(f"s_lshl_b32 {sT0}, {sS}, 9")
    a(f"v_and_b32 {vMW}, 0x1f0, {vL16}")
    a(f"v_add_u32 {vMW}, {sT0}, {vMW}")
    vRW = f"v{T0}"; vRR = f"v{T0+1}"; vOP = f"v{T0+2}"; vOW = f"v{T0+3}"; vFW = f"v{T0+7}"
    a(f"v_lshrrev_b32 {vA}, 7, {vTR}")
    a(f"v_and_b32 {vB_}, 3, {vA}")
    a(f"v_bfe_u32 {vC}, {vA}, 3, 1")
    a(f"v_lshl_or_b32 {vB_}, {vC}, 2, {vB_}")
    a(f"s_lshl_b32 {sT0}, {sWAVE}, 1")
    a(f"v_xor_b32 {vB_}, {sT0}, {vB_}")
    a(f"v_and_b32 {vC}, 0x18, {vTR}")
    a(f"v_lshl_add_u32 {vC}, {vB_}, 5, {vC}")
    a(f"v_lshl_add_u32 {vTR4}, {vA}, 8, {vC}")
    a(f"v_add_u32 {vTR4}, {L_WO}, {vTR4}")
    a(f"v_xor_b32 {vTR5}, 32, {vTR4}")
    a(f"v_and_b32 {vC}, 3, {vLANE}")
    a(f"v_lshlrev_b32 {vC}, 8, {vC}")
    a(f"v_add_u32 {vBO}, {vC}, {vSQ}")
    a(f"v_add_u32 {vBO}, {L_OL}, {vBO}")
    a(f"v_and_b32 {vC}, 7, {vLANE}")
    a(f"v_mul_u32_u24 {vRW}, {RED_H}, {vC}")
    a(f"v_lshl_add_u32 {vRW}, {vSQ}, 3, {vRW}")
    a(f"s_mul_i32 {sT0}, {sWAVE}, {RED_W}")
    a(f"v_add_u32 {vRW}, {sT0}, {vRW}")
    a(f"v_lshrrev_b32 {vC}, 5, {vTID}")
    a(f"v_mul_u32_u24 {vRR}, {RED_H}, {vC}")
    a(f"v_lshlrev_b32 {vMR}, 4, {vC}")
    a(f"v_add_u32 {vMR}, {L_F}, {vMR}")
    a(f"v_lshlrev_b32 {vOP}, 15, {vC}")
    a(f"v_and_b32 {vC}, 31, {vTID}")
    a(f"v_lshl_add_u32 {vRR}, {vC}, 4, {vRR}")
    a(f"v_lshl_add_u32 {vOP}, {vC}, 4, {vOP}")
    a(f"v_and_b32 {vFW}, 0x70, {vL16}")
    a(f"v_bfe_u32 {vC}, {vLANE}, 3, 2")
    a(f"v_lshl_add_u32 {vFW}, {vC}, 2, {vFW}")
    a(f"v_add_u32 {vFW}, {L_F}, {vFW}")
    a(f"v_bfe_u32 {vC}, {vLANE}, 3, 2")
    a(f"v_lshlrev_b32 {vOW}, 6, {vC}")
    a(f"v_and_b32 {vC}, 7, {vLANE}")
    a(f"v_lshl_add_u32 {vOW}, {vC}, 1, {vOW}")
    a(f"s_lshl_b32 {sT0}, {sWAVE}, 8")
    a(f"s_add_u32 {sT0}, {sT0}, {L_OL}")
    a(f"v_add_u32 {vOW}, {sT0}, {vOW}")
    a(f"v_lshrrev_b32 {vC}, 3, {vLANE}")
    a(f"v_and_b32 {vPUB}, 0x70, {vL16}")
    a(f"v_lshl_add_u32 {vPUB}, {vC}, 12, {vPUB}")
    a(f"v_and_b32 {vB2}, 3, {vLANE}")
    a(f"v_lshlrev_b32 {vB2}, 1, {vB2}")
    a(f"s_lshl_b32 {sT0}, {sRG}, 3")
    a(f"s_add_u32 {sT0}, {sT0}, {sW4C}")
    a(f"v_add_u32 {vB2}, {sT0}, {vB2}")
    a(f"v_bfe_u32 {vC}, {vLANE}, 2, 2")
    a(f"v_lshl_add_u32 {vOUT}, {vC}, 11, {vB2}")
    a(f"v_lshrrev_b32 {vC}, 2, {vLANE}")
    a(f"v_and_b32 {vX1}, 0x30, {vL16}")
    a(f"v_lshl_add_u32 {vX1}, {vC}, 7, {vX1}")
    a(f"s_lshl_b32 {sT0}, {sHKV}, 18")
    a(f"s_lshl_b32 {sT1}, {sB}, 13")
    a(f"s_add_u32 {sT0}, {sT0}, {sT1}")
    a(f"s_lshl_b32 {sT1}, {sS}, 9")
    a(f"s_add_u32 {sT0}, {sT0}, {sT1}")
    a(f"s_add_u32 {sOPO}, {sT0}, {OP}")
    a(f"s_lshl_b32 {sT0}, {sRG}, 15")
    a(f"s_lshl_b32 {sT1}, {sWAVE}, 13")
    a(f"s_add_u32 {sT0}, {sT0}, {sT1}")
    a(f"s_add_u32 {sOPG}, {sT0}, {OP}")
    a(f"s_lshl_b32 {sT2}, {sW4C}, 8")
    a(f"s_lshl_b32 {sT0}, {sWAVE}, 14")
    a(f"s_add_u32 {sT2}, {sT2}, {sT0}")
    a(f"s_lshl_b32 {sT0}, {sRG}, 7")
    a(f"s_add_u32 {sT2}, {sT2}, {sT0}")
    a(f"s_add_u32 {sT2}, {sT2}, {ZP}")
    a(f"s_lshl_b32 {sT0}, {sW4C}, 4")
    a(f"s_add_u32 {sT0}, {sT0}, {RG}")
    a(f"v_and_b32 {vC}, 31, {vLANE}")
    a(f"v_lshlrev_b32 {vC}, 7, {vC}")
    a(f"v_add_u32 {vCWA}, {sT0}, {vC}")
    a(f"v_and_b32 {vC}, 31, {vLANE}")
    a(f"v_min_u32 {vC}, 27, {vC}")
    a(f"s_lshl_b32 {sT0}, {sRG}, 2")
    a(f"s_add_u32 {sT0}, {sT0}, {sWAVE}")
    a(f"s_mul_i32 {sT0}, {sT0}, 448")
    a(f"s_add_u32 {sT0}, {sT0}, {FH}")
    a(f"v_lshlrev_b32 {vC}, 4, {vC}")
    a(f"v_add_u32 {vFG}, {sT0}, {vC}")
    a.nofeed()
    stamp("sm")

    def factors():
        a(f"s_cmp_lg_u32 {sWAVE}, {7 if 'noml' in dbg else 0}")
        a(f"s_cbranch_scc1 L_nofac")
        sv = a.vm_done
        check_loop("ml", GM + [GMW], issue_ml, tok["ML"])
        m_, t_, l_ = vA, vB_, vC
        a(f"v_max3_f32 {m_}, v{GM[0]}, v{GM[1]}, v{GM[2]}")
        a(f"v_max3_f32 {t_}, v{GM[3]}, v{GM[4]}, v{GM[5]}")
        a(f"v_max3_f32 {m_}, {m_}, v{GM[6]}, v{GM[7]}")
        a(f"v_max_f32 {m_}, {m_}, {t_}")
        a(f"v_max_f32_dpp {m_}, {m_}, {m_} row_ror:8 row_mask:0xf bank_mask:0xf")
        rows_reduce("v_max_f32", [m_], [t_])
        for j in range(8):
            a(f"v_sub_f32 v{GM[j]}, v{GM[j]}, {m_}")
        a(f"v_sub_f32 {vMX}, v{GMW}, {m_}")
        for j in range(8):
            a(f"v_mul_f32 v{GM[j]}, {sLOG2E}, v{GM[j]}")
        a(f"v_mul_f32 {vMX}, {sLOG2E}, {vMX}")
        for j in range(8):
            a(f"v_exp_f32 v{GM[j]}, v{GM[j]}")
        a(f"v_exp_f32 {vMX}, {vMX}")
        a(f"v_mul_f32 {l_}, v{GM[0]}, v{GM[0]+2}")
        for j in range(1, 8):
            a(f"v_fmac_f32 {l_}, v{GM[j]}, v{GM[j]+2}")
        a(f"v_add_f32_dpp {l_}, {l_}, {l_} row_ror:8 row_mask:0xf bank_mask:0xf")
        rows_reduce("v_add_f32", [l_], [t_])
        a(f"v_rcp_f32 {t_}, {l_}")
        a(f"v_fma_f32 {m_}, -{l_}, {t_}, 1.0")
        a(f"v_fma_f32 {t_}, {m_}, {t_}, {t_}")
        a(f"v_mul_f32 {vMX}, {vMX}, {t_}")
        a(f"ds_write_b32 {vFW}, {vMX}")
        a.label("L_nofac")
        a.vm_done = sv
        a.wait_vm(tok["ML"] + 1)
        a(f"v_xor_b32 {vCW0}, {sLOC}, {vCW0}")
        a(f"v_xor_b32 {vCW1}, {vTAG}, {vCW1}")
        a(f"v_or_b32 {vCW0}, {vCW0}, {vCW1}")
        a(f"v_cmp_ne_u32 vcc, 0, {vCW0}")
        a(f"s_or_b32 {sLOC}, vcc_lo, vcc_hi")
        if "nofh" not in dbg:
            check_loop("fh", [GF], issue_fh, tok["FH"])
        a(f"v_and_b32 {vC}, 31, {vLANE}")
        a(f"v_cmp_gt_u32 vcc, 28, {vC}")
        a(f"s_lshl_b32 {sT0}, {sWAVE}, 6")
        a(f"s_add_u32 {sT0}, {sT0}, {L_HL}")
        a(f"v_lshl_add_u32 {vC}, {vC}, 1, {sT0}")
        a(f"v_cndmask_b32 v{GF}, 0, v{GF}, vcc")
        a(f"v_cndmask_b32 v{GF+2}, 0, v{GF+2}, vcc")
        a(f"ds_write_b16 {vC}, v{GF}")
        a(f"ds_write_b16_d16_hi {vC}, v{GF} offset:256")
        a(f"ds_write_b16 {vC}, v{GF+2} offset:512")
        a(f"ds_write_b16_d16_hi {vC}, v{GF+2} offset:768")
        if not zloc:
            a(f"s_mov_b32 {sLOC}, 1")

    def pv(t):
        if "nopv" in dbg:
            return
        base = V0 + 32 * (t % 4)
        for e in range(8):
            dd = e >> 1
            sel = sSELHI if e & 1 else sSELLO
            for u in range(4):
                a(f"v_perm_b32 v{D0 + 4*e + u}, v{base + 8*u + 4 + dd}, v{base + 8*u + dd}, {sel}")
            if e >= 1:
                ee = e - 1
                c = "0" if t == 0 else aq(4*ee)
                a(f"v_mfma_f32_16x16x32_bf16 {aq(4*ee)}, {vq(D0 + 4*ee)}, {vq(S0 + 8*t)}, {c}")
        c = "0" if t == 0 else aq(28)
        a(f"v_mfma_f32_16x16x32_bf16 {aq(28)}, {vq(D0 + 28)}, {vq(S0 + 8*t)}, {c}")

    idx["WOa"] = idx["W2"] + wo_early
    idx["WOb"] = max(idx["WOa"], idx["WOa"] + wo7)
    idx["W2a"] = min(idx["W2"], idx["V7"] + w2a)
    nxt = ["V3", "V4", "V5", "V6", "V7", "W2a", "WOa", "WOb"]
    a.flush(idx[lexp])
    aft = ["V4", "V5", "V6", "V7"] + nxt[4:] if burst else nxt
    for t in range(8):
        if "novw" not in dbg:
            wait(f"V{t}")
        a.feed(idx[nxt[t]], P["pv"])
        pv(t)
        a.nofeed()
        a.flush(idx[aft[t]])
        if t == vbar:
            a("s_barrier")
        if t == facpos and "noqml" not in dbg:
            factors()
            stamp("fac")
    stamp("pv")
    a(f"s_mov_b32 exec_lo, 0x00ff00ff")
    a(f"s_mov_b32 exec_hi, 0x00ff00ff")
    for e in range(8):
        a(f"ds_write_b128 {vRW}, {aq(4*e)} offset:{L_RED + 16*e}")
    a(f"s_mov_b64 exec, -1")
    R = D0
    TB = ["v44", "v45", "v46", "v47"]
    tag_bytes(TB)
    a(f"s_movk_i32 {sT3}, 0xff")
    a(f"s_add_u32 {sT0}, {sOPG}, 4096")
    a.lgkm(0)
    stamp("red_w")
    a("s_barrier")
    stamp("b5")
    a(f"ds_read_b128 {vq(R+16)}, {vMR}")
    for w in range(4):
        a(f"ds_read_b128 {vq(R + 4*w)}, {vRR} offset:{L_RED + w*RED_W}")
    for w in range(4):
        a.lgkm(0 if stamps else 3 - w)
        for r in range(4):
            if w == 0:
                a(f"v_mul_f32 v{R+r}, v{R+16}, v{R+r}")
            else:
                a(f"v_fmac_f32 v{R+r}, v{R+16+w}, v{R+4*w+r}")
    for r in range(4):
        a(f"v_bfi_b32 v{48+r}, {sT3}, {TB[r]}, v{R+r}")
    a(f"buffer_store_dwordx4 {vq(48)}, {vOP}, {srd(rWS)}, {sOPO} offen sc1")
    stamp("opub")
    GO = V0

    def issue_op(fl, js=range(8)):
        t = None
        for j in js:
            so = sOPG if j < 4 else sT0
            t = a(f"buffer_load_dwordx4 {vq(GO + 4*j)}, {vL16}, {srd(rWS)}, {so} offen offset:{1024*(j&3)}{fl}")
        return t

    GC = V0 + 96
    if opfirst:
        tOP = issue_op(fo)
    a(f"s_lshl_b32 {sT3}, {sWAVE}, 13")
    if opmid:
        a.flush(idx["W2"] + opmid - 1)
        tOP = issue_op(fo)
    a.flush(idx["WO"])
    a(f"s_movk_i32 {sT3}, 0xff")
    if "exit" in dbg:
        a("s_waitcnt vmcnt(0)")
        a.vm_done = a.vm_issued
        stamp("wo")
        a(f"s_cmp_lg_u32 {sWAVE}, 0")
        a(f"s_cbranch_scc1 L_end")
        a(f"s_branch L_stamps")
    NOP = 4 if "halfop" in dbg else 1 if "oneop" in dbg else 8
    if "lateop" not in dbg and not opfirst and not opmid:
        tOP = issue_op(fo, range(NOP))
    AWO, AW2 = 64, 96
    Z = D0
    BH, BO = S0, S0 + 16
    a.wait_vm(tok["W2"])
    a("s_barrier")
    for ks in range(4):
        a(f"ds_read_b128 {vq(BH + 4*ks)}, {vBO} offset:{L_HL - L_OL + 64*ks}")
    for (base, off) in ((AW2, 32768), (AWO, 0)):
        if base == AWO and opmid:
            break
        if base == AWO:
            if opfirst:
                check_loop("op1", [], issue_op, tOP, emb=TB, equads=[GO + 4*j for j in range(NOP)], clean=GC, once=True)
            a.wait_vm(tok["WO"])
            if "exit" not in dbg:
                stamp("wo")
            a("s_barrier")
        for ks in range(4):
            for c in range(2):
                for hh in range(2):
                    a(f"ds_read_b64_tr_b16 {aq(base + 16*c + 4*ks + 2*hh, 2)}, {vTR5 if c else vTR4} offset:{off + ks*8192 + hh*1024}")
            if ks == 1:
                a.lgkm(0)
        if base == AW2:
            a.lgkm(0)
            for ks in range(4):
                for c in range(2):
                    cc = "0" if ks == 0 else vq(Z + 4*c)
                    a(f"v_mfma_f32_16x16x32_bf16 {vq(Z + 4*c)}, {vq(BH + 4*ks)}, {aq(AW2 + 16*c + 4*ks)}, {cc}")
    if "lateop" in dbg:
        tOP = issue_op(fo, range(NOP))
    if "nochk" not in dbg:
      check_loop("op", [], issue_op, tOP, emb=TB, equads=[GO + 4*j for j in range(NOP)], clean=GC)
    GO = GC
    stamp("op_ok")
    O = V0 + 32
    for r in range(4):
        a(f"v_add_f32 v{O+r}, v{GO+r}, v{GO+4+r}")
        a(f"v_add_f32 v{O+4+r}, v{GO+8+r}, v{GO+12+r}")
        a(f"v_add_f32 v{O+8+r}, v{GO+16+r}, v{GO+20+r}")
        a(f"v_add_f32 v{O+12+r}, v{GO+24+r}, v{GO+28+r}")
    for r in range(4):
        a(f"v_add_f32 v{O+r}, v{O+r}, v{O+4+r}")
        a(f"v_add_f32 v{O+8+r}, v{O+8+r}, v{O+12+r}")
    for r in range(4):
        a(f"v_add_f32 v{O+r}, v{O+r}, v{O+8+r}")
    for r in range(4):
        a(f"v_mov_b32 v{O+4+r}, v{O+r}")
    for r in range(4):
        a(f"v_permlane32_swap_b32 v{O+r}, v{O+4+r}")
    for r in range(4):
        a(f"v_add_f32 v{O+r}, v{O+r}, v{O+4+r}")
    a(f"v_cvt_pk_bf16_f32 v{O}, v{O}, v{O+1}")
    a(f"v_cvt_pk_bf16_f32 v{O+2}, v{O+2}, v{O+3}")
    a(f"s_mov_b32 exec_hi, 0")
    a(f"ds_write_b16 {vOW}, v{O}")
    a(f"ds_write_b16_d16_hi {vOW}, v{O} offset:16")
    a(f"ds_write_b16 {vOW}, v{O+2} offset:32")
    a(f"ds_write_b16_d16_hi {vOW}, v{O+2} offset:48")
    a(f"s_mov_b64 exec, -1")
    a.lgkm(0)
    stamp("cmb")
    if opmid:
        a.wait_vm(tok["WO"])
        stamp("wo")
    a("s_barrier")
    stamp("b6")
    for ks in range(4):
        a(f"ds_read_b128 {vq(BO + 4*ks)}, {vBO} offset:{64*ks}")
        if opmid:
            for c in range(2):
                for hh in range(2):
                    a(f"ds_read_b64_tr_b16 {aq(AWO + 16*c + 4*ks + 2*hh, 2)}, {vTR5 if c else vTR4} offset:{ks*8192 + hh*1024}")
            if ks == 2:
                a.lgkm(0 if stamps else 10)
                for c in range(2):
                    a(f"v_mfma_f32_16x16x32_bf16 {vq(Z + 4*c)}, {vq(BO)}, {aq(AWO + 16*c)}, {vq(Z + 4*c)}")
    for ks in range(1 if opmid else 0, 4):
        a.lgkm(0 if stamps else (3 - ks) * (5 if opmid else 1))
        for c in range(2):
            a(f"v_mfma_f32_16x16x32_bf16 {vq(Z + 4*c)}, {vq(BO + 4*ks)}, {aq(AWO + 16*c + 4*ks)}, {vq(Z + 4*c)}")
    ZS = 48
    a(f"s_cmp_eq_u32 {sLOC}, 0")
    for r in range(4):
        a(f"v_mov_b32_dpp v{Z + r}, v{Z + 4 + r} quad_perm:[0,1,2,3] row_mask:0x2 bank_mask:0xf")
    for r in range(4):
        a(f"v_bfi_b32 v{ZS + r}, {sT3}, {TB[r]}, v{Z + r}")
    a(f"s_mov_b32 exec_hi, 0")
    a(f"s_cbranch_scc1 L_zplain")
    a(f"buffer_store_dwordx4 {vq(ZS)}, {vPUB}, {srd(rWS)}, {sT2} offen sc1")
    a(f"s_branch L_zdone")
    a.label("L_zplain")
    a.vm_issued -= 1
    a(f"buffer_store_dwordx4 {vq(ZS)}, {vPUB}, {srd(rWS)}, {sT2} offen")
    a.label("L_zdone")
    a(f"s_mov_b64 exec, -1")
    stamp("zpub")
    a(f"s_cmp_lg_u32 {sWAVE}, 0")
    a(f"s_cbranch_scc1 L_end")
    GZ = V0 + 64
    a(f"s_lshr_b32 {sT0}, {sRG}, 1")
    a(f"s_lshl_b32 {sT0}, {sT0}, 12")
    a(f"s_lshl_b32 {sT1}, {sW4C}, 8")
    a(f"s_add_u32 {sT0}, {sT0}, {sT1}")
    a(f"s_and_b32 {sT1}, {sRG}, 1")
    a(f"s_lshl_b32 {sT1}, {sT1}, 6")
    a(f"s_add_u32 {sT0}, {sT0}, {sT1}")
    a(f"s_add_u32 {sT0}, {sT0}, {ZP}")

    def issue_z(fl, js=range(2)):
        t = None
        for j in js:
            t = a(f"buffer_load_dwordx4 {vq(GZ + 4*j)}, {vX1}, {srd(rWS)}, {sT0} offen offset:{2048*j}{fl}")
        return t

    tZ = issue_z(" sc1")
    x0, b0 = f"v{O}", f"v{O+1}"
    a(f"v_and_b32 {x0}, 0xffff0000, {vX}")
    a(f"v_and_b32 {b0}, 0xffff0000, {vB2}")
    a(f"v_add_f32 {x0}, {x0}, {b0}")
    check_loop("z", [], issue_z, tZ, emb=TB, equads=[GZ + 4*j for j in range(2)], clean=GZ + 8)
    GZ += 8
    stamp("z_ok")
    for r in range(4):
        a(f"v_add_f32 v{GZ+r}, v{GZ+r}, v{GZ+4+r}")
    for b in (4, 8):
        for r in range(4):
            a(f"v_add_f32_dpp v{GZ+r}, v{GZ+r}, v{GZ+r} row_ror:{b} row_mask:0xf bank_mask:0xf")
    for r in range(1, 4):
        a(f"v_mov_b32_dpp v{GZ}, v{GZ+r} quad_perm:[0,1,2,3] row_mask:0xf bank_mask:{hex(1 << r)}")
    rows_reduce("v_add_f32", [f"v{GZ}"], [f"v{GZ+1}"])
    a(f"v_add_f32 {x0}, {x0}, v{GZ}")
    a(f"v_cvt_pk_bf16_f32 {x0}, {x0}, {x0}")
    a(f"s_mov_b64 exec, 0xffff")
    a(f"global_store_short {vOUT}, {x0}, {sp(pOUT)}")
    if stamps:
        a.label("L_stamps")
        stamp("end")
        a.lgkm(0)
        a(f"s_mov_b64 exec, 1")
        a(f"s_mul_i32 {sT0}, s2, {8*len(STAMPS)}")
        a(f"s_add_u32 {sT0}, {sT0}, 0x8000000")
        a(f"v_mov_b32 {vA}, {sT0}")
        for i, (lo, hi) in enumerate(STAMPS):
            a(f"v_mov_b32 v{D0+2*i}, s{lo}")
            a(f"v_mov_b32 v{D0+2*i+1}, s{hi}")
        for i in range(len(STAMPS)):
            a(f"global_store_dwordx2 {vA}, {vq(D0+2*i, 2)}, {sp(pWS)} offset:{8*i}")
    a(f"s_cmp_lg_u32 s2, 0")
    a(f"s_cbranch_scc1 L_end")
    a(f"s_mov_b64 exec, 1")
    a(f"v_mov_b32 {vA}, 0")
    a(f"global_store_dword {vA}, {vTAG}, {sp(pWS)}")
    a.label("L_end")
    a("s_endpgm")
    assert a.fi == len(a.fq)
    a.raw('.section .rodata,"a"')
    a.raw(".p2align 6")
    a.raw(f".amdhsa_kernel {NAME}_kernel")
    a.raw("  .amdhsa_next_free_vgpr 512")
    a.raw("  .amdhsa_next_free_sgpr 102")
    a.raw("  .amdhsa_accum_offset 256")
    a.raw("  .amdhsa_group_segment_fixed_size 0")
    a.raw("  .amdhsa_kernarg_size 104")
    a.raw("  .amdhsa_user_sgpr_count 2")
    a.raw("  .amdhsa_user_sgpr_kernarg_segment_ptr 1")
    a.raw("  .amdhsa_system_sgpr_workgroup_id_x 1")
    a.raw("  .amdhsa_float_denorm_mode_32 3")
    a.raw(".end_amdhsa_kernel")
    return a.text()


if __name__ == "__main__":
    import argparse, json
    ap = argparse.ArgumentParser()
    ap.add_argument("-o", default="cdna_kernels/" + NAME + ".s")
    ap.add_argument("--stamps", default="")
    ap.add_argument("--kw", default="{}", help="json dict of gen() keyword arguments")
    x = ap.parse_args()
    kw = json.loads(x.kw)
    open(x.o, "w").write(gen(stamps=x.stamps.split(",") if x.stamps else None, **kw))
```

```python
import re

TRANS = ("v_exp_f32", "v_log_f32", "v_rcp_f32", "v_rsq_f32", "v_sqrt_f32", "v_sin_f32", "v_cos_f32")


def _regs(tok):
    tok = tok.strip()
    neg = tok.lstrip("-")
    if neg.startswith("abs(") and neg.endswith(")"):
        neg = neg[4:-1]
    neg = neg.strip("|")
    m = re.fullmatch(r"([vas])(\d+)", neg)
    if m:
        return {(m.group(1), int(m.group(2)))}
    m = re.fullmatch(r"([vas])\[(\d+):(\d+)\]", neg)
    if m:
        return {(m.group(1), i) for i in range(int(m.group(2)), int(m.group(3)) + 1)}
    if neg in ("vcc", "vcc_lo", "vcc_hi"):
        return {("s", "vcc")}
    if neg == "exec":
        return {("s", "exec")}
    if neg == "m0":
        return {("s", "m0")}
    return set()


class Ins:
    def __init__(self, text):
        self.text = text
        t = text.split(";")[0].strip()
        parts = t.split(None, 1)
        self.op = parts[0]
        rest = parts[1] if len(parts) > 1 else ""
        rest = re.sub(r"(quad_perm|op_sel|op_sel_hi|neg_lo|neg_hi):\[([^\]]*)\]", lambda m: m.group(1) + ":[" + m.group(2).replace(",", "_") + "]", rest)
        rest = re.sub(r"hwreg\(([^)]*)\)", lambda m: "hwreg(" + m.group(1).replace(",", "_").replace(" ", "") + ")", rest)
        ops = [x.strip() for x in rest.split(",")]
        mods = ""
        if ops and ops[-1]:
            sp = ops[-1].split(None, 1)
            ops[-1] = sp[0]
            mods = sp[1] if len(sp) > 1 else ""
        self.ops = ops
        self.mods = mods
        op = self.op
        R = [_regs(o) for o in ops]
        for o, r in zip(ops, R):
            assert r or not re.match(r"-?[vas]\[?\d", o), f"operand not parsed: {o} in {text}"
        self.w = set()
        self.r = set()
        self.kind = "other"
        self.states = 1
        U = lambda lst: set().union(*lst) if lst else set()
        if op == "s_nop":
            self.states = int(ops[0], 0) + 1
            self.kind = "salu"
        elif op.startswith("v_mfma"):
            self.kind = "mfma"
            self.w = R[0]
            self.a, self.b, self.c = R[1], R[2], R[3]
            self.r = R[1] | R[2] | R[3]
        elif op.startswith("v_cmp"):
            self.kind = "valu"
            self.w = R[0]
            self.r = U(R[1:])
        elif op.startswith("v_readfirstlane") or op.startswith("v_readlane"):
            self.kind = "valu"
            self.w = R[0]
            self.r = U(R[1:])
        elif op.startswith("v_permlane"):
            self.kind = "valu"
            self.w = R[0] | R[1]
            self.r = R[0] | R[1]
        elif op.startswith("v_"):
            self.kind = "valu"
            self.w = R[0]
            self.r = U(R[1:])
            if "_co_" in op:
                self.w |= R[1]
                self.r = U(R[2:])
            if op.startswith("v_fmac") or op.startswith("v_writelane") or "_dpp" in op and "bound_ctrl" not in mods and False:
                self.r |= R[0]
            if "_dpp" in op and ("row_mask:0xf" not in mods or "bank_mask:0xf" not in mods):
                self.keeps = R[0]
            if op.startswith("v_cndmask") and len(ops) == 3:
                self.r |= {("s", "vcc")}
        elif op.startswith("buffer_load") or op.startswith("global_load"):
            self.kind = "vmem"
            if re.search(r"\blds\b", mods) or "load_lds" in op:
                self.r = U(R) | {("s", "m0")}
                self.lds = True
            else:
                self.w = R[0]
                self.r = U(R[1:])
        elif op.startswith("buffer_store"):
            self.kind = "vmem"
            self.r = U(R)
            self.data = R[0]
        elif op.startswith("global_store"):
            self.kind = "vmem"
            self.r = U(R)
            self.data = R[1]
        elif op.startswith("buffer_atomic") or op.startswith("global_atomic"):
            self.kind = "vmem"
            self.r = U(R)
            if "sc0" in mods:
                self.w = R[0]
        elif op.startswith("ds_read") or op.startswith("ds_bpermute") or op.startswith("ds_swizzle"):
            self.kind = "ds"
            self.w = R[0]
            self.r = U(R[1:])
        elif op.startswith("ds_"):
            self.kind = "ds"
            self.r = U(R)
        elif op.startswith("s_"):
            self.kind = "salu"
            if not (op.startswith("s_cmp") or op.startswith("s_cbranch") or op in (
                    "s_waitcnt", "s_barrier", "s_branch", "s_endpgm", "s_sleep", "s_setprio", "s_bitcmp1_b32", "s_bitcmp0_b32")):
                self.w = R[0] if R else set()
                self.r = U(R[1:])
            else:
                self.r = U(R)
        self.trans = any(op.startswith(x) for x in TRANS)
        self.dpp = "_dpp" in op
        self.wide_store = hasattr(self, "data") and ("x3" in op or "x4" in op)


def need(prev, cur):
    n = 0
    vw = {x for x in prev.w if x[0] in "va"}
    sw = {x for x in prev.w if x[0] == "s"}
    if prev.kind == "valu":
        if cur.kind == "valu":
            if cur.dpp and (vw & (cur.r | getattr(cur, "keeps", set()))):
                n = max(n, 2)
            if cur.op.startswith("v_permlane") and (vw & cur.r):
                n = max(n, 2)
            if (cur.op.startswith("v_readfirstlane") or cur.op.startswith("v_readlane")) and (vw & cur.r):
                n = max(n, 1)
            if prev.trans and not cur.trans and (vw & cur.r):
                n = max(n, 1)
            if prev.trans and cur.trans and (vw & cur.r):
                n = max(n, 1)
            if sw & cur.r:
                n = max(n, 4 if cur.op.startswith("v_readlane") or cur.op.startswith("v_writelane") else 2)
            if ("sdwa" in prev.op or "op_sel" in prev.mods) and (vw & (cur.r | cur.w)):
                n = max(n, 1)
        if cur.kind == "mfma" and (vw & cur.r):
            n = max(n, 2)
        if cur.kind == "vmem" and (sw & cur.r):
            n = max(n, 5)
        if cur.kind == "salu" and (sw & cur.r):
            n = max(n, 1)
        if prev.trans and cur.kind in ("vmem", "ds") and (vw & cur.r):
            n = max(n, 1)
    if prev.kind == "mfma":
        passes = 8 if "32x32" in prev.op else 4
        big = {4: 8, 8: 12}[passes]
        if cur.kind == "mfma":
            if prev.w & (cur.a | cur.b):
                n = max(n, big)
            if (prev.w & cur.c) and prev.w != cur.c:
                n = max(n, {4: 6, 8: 10}[passes])
            if (prev.w & cur.w) and not (prev.w == cur.c):
                n = max(n, big)
        elif cur.kind in ("valu", "vmem", "ds"):
            if prev.w & (cur.r | cur.w):
                n = max(n, big)
            if cur.kind == "valu" and (prev.c & cur.w):
                n = max(n, {4: 3, 8: 7}[passes])
    if prev.wide_store:
        if prev.data & cur.w:
            n = max(n, 2)
    if prev.kind == "salu" and ("s", "m0") in prev.w and getattr(cur, "lds", False):
        n = max(n, 1)
    return n


class Asm:
    def __init__(self):
        self.lines = []
        self.hist = []
        self.vm_issued = 0
        self.vm_done = 0
        self.nops = 0
        self.fq = []
        self.fi = 0
        self.flimit = 0
        self.fperiod = 0
        self.fcount = 0
        self.infeed = False
        self.grace = 0
        self.grace_n = 0
        self.cap = 63

    def raw(self, s):
        self.lines.append(s)

    def comment(self, s):
        self.lines.append("    ; " + s)

    def label(self, name, keep_hist=True):
        self.lines.append(name + ":")
        if not keep_hist:
            self.hist = []

    def __call__(self, text):
        ins = Ins(text)
        dist = 0
        pad = 0
        for p in reversed(self.hist):
            if dist >= 20:
                break
            pad = max(pad, need(p, ins) - dist)
            dist += p.states
        if pad > 0:
            self.nops += pad
            k = pad
            while k > 0:
                c = min(k, 16)
                nop = Ins(f"s_nop {c-1}")
                self.lines.append(f"    s_nop {c-1}")
                self.hist.append(nop)
                k -= c
        self.lines.append("    " + text)
        self.hist.append(ins)
        if len(self.hist) > 64:
            self.hist = self.hist[-40:]
        tok = None
        if ins.kind == "vmem":
            self.vm_issued += 1
            assert self.vm_issued - self.vm_done <= 63, f"vmcnt overflow at: {text}"
            tok = self.vm_issued - 1
            if "store" in ins.op:
                self.grace = self.grace_n
        if self.fperiod and not self.infeed:
            self.fcount += 1
            if self.fcount >= self.fperiod and self.fi < self.flimit:
                self.fcount = 0
                self.feed_one()
        return tok

    def feed_one(self):
        self.infeed = True
        if self.grace > 0:
            self.grace -= 1
            self.room(1)
        else:
            self.room(1, self.cap)
        self.fq[self.fi]()
        self.fi += 1
        self.infeed = False

    def flush(self, upto):
        while self.fi < upto:
            self.feed_one()

    def feed(self, upto, period):
        self.flimit = upto
        self.fperiod = period
        self.fcount = period - 1 if period else 0

    def nofeed(self):
        self.fperiod = 0

    def wait_vm(self, tok):
        if tok < self.vm_done:
            return
        n = self.vm_issued - tok - 1
        self(f"s_waitcnt vmcnt({n})")
        self.vm_done = tok + 1

    def room(self, n, cap=63):
        out = self.vm_issued - self.vm_done
        if out + n > cap:
            k = cap - n
            self(f"s_waitcnt vmcnt({k})")
            self.vm_done = self.vm_issued - k

    def last(self):
        return self.vm_issued - 1

    def lgkm(self, n=0):
        self(f"s_waitcnt lgkmcnt({n})")

    def text(self):
        return "\n".join(self.lines) + "\n"
```

```python
import sys, struct
sys.path.insert(0, "dev")
from asmlib import Asm

NAME = "parallel_sum__gqa_block_cached__mixer_channel_mlp__decode"
HEADER = open("cdna_kernels/" + NAME + ".s.ref").read().split("; Override launch")[0]


def f32(x):
    return "0x%08x" % struct.unpack("<I", struct.pack("<f", x))[0]


QP, HP, FH, OP, ML, RG, ZP, WS_SIZE = 0x100000, 0x180000, 0x1c0000, 0x200000, 0x300000, 0x340000, 0x400000, 0x600000
L_WQ, L_W1, L_WO, L_W2 = 0, 32768, 65536, 98304
L_W1B = L_WO
L_RED = 0
L_XN, L_Y, L_Q, L_F, L_OL, L_HL = 131072, 139264, 147456, 149504, 149760, 150784
LDS_BYTES = 151808
RED_W, RED_H = 4224, 528

sWAVE = "s3"
pX, pK, pV, pWQ, pWO, pW1, pB1, pW2, pB2, pOUT, pWS = 16, 18, 20, 22, 24, 28, 30, 32, 34, 36, 40
sF0, sF1 = "s26", "s27"
sROT, sU, sQT, sKQ1 = "s38", "s86", "s88", "s43"
sCG1, sMLO, sLOC = "s0", "s1", "s80"
sOPO, sOPG = "s42", "s43"
rK, rV, rWQ, rW1, rWO, rW2, rWS = 44, 48, 52, 56, 60, 64, 68
sT0, sT1, sB, sHKV, sS, sKQ, sCG, sRG, sCG4 = ["s%d" % i for i in range(72, 81)]
sSELLO, sSELHI, sSCALE, sLOG2E, sT2 = "s81", "s82", "s83", "s84", "s85"
sMLG, sW4C = "s86", "s87"
sCNT, sT3 = "s88", "s89"
STAMPS = [(4, 5), (6, 7), (8, 9), (10, 11), (12, 13), (14, 15), (90, 91), (92, 93), (94, 95), (96, 97), (98, 99), (100, 101)]
vTID, vLANE, vK, vV, vL16, vTAG, vTR, vPUB, vB1, vW4, vSQ, vMX, vL = ["v%d" % i for i in range(13)]
vA, vB_, vC = "v13", "v14", "v15"
vX, vX1, vB2, vOUT, vTR5, vTR4, vBO, vMR = ["v%d" % i for i in range(16, 24)]
Q0 = 16
D0 = 24
T0 = 56
S0 = 64
V0 = 128


def srd(r):
    return f"s[{r}:{r+3}]"


def sp(r):
    return f"s[{r}:{r+1}]"


def vq(r, n=4):
    return f"v[{r}:{r+n-1}]"


def aq(r, n=4):
    return f"a[{r}:{r+n-1}]"


def gen(nt=" nt", wnt=" nt", stamps=None, limit=1 << 18, xaff=1, fq="", fo="", wsplit=1, dbg="", masked=2, slp=0, gpos=6,
        per=None, zloc=1, mlpos=5, facpos=4, wo_early=-3, wo7=0, w2a=0, qemb=0, gafter=2, lqk='V1', lexp='V2', burst=0, opfirst=0, opmid=0, vbar=5, kvmap='g4', rotm=5, vrot=0, quota=(2, 1, 2, 1, 0, 0, 1, 1), stlate=0, wpre=0, wmid=0, w2b5=0, w2pos=8, tailopt=1, step=1, cap=63, cap0=63, capw=63, grace=0, lag=3, capq=None, capv=None, gracew=8, probe=0, capslow=3, ppos=7):
    a = Asm()
    if "nost" in dbg or "nobar" in dbg:
        class A2(Asm):
            def __call__(self, text):
                if "nost" in dbg and text.startswith("buffer_store"):
                    return self.vm_issued - 1
                if "nobar" in dbg and text.startswith("s_barrier"):
                    return None
                return Asm.__call__(self, text)
        a = A2()
    P = dict(ln=22, proj=10, qh=10, qk=40, exp=30, pv=5)
    P.update(per or {})

    def stamp(name):
        if stamps and name in stamps:
            lo, hi = STAMPS[stamps.index(name)]
            a(f"s_memrealtime s[{lo}:{hi}]")

    def rows_reduce(op, regs, tmps):
        for sw in ("v_permlane16_swap_b32", "v_permlane32_swap_b32"):
            for v, t in zip(regs, tmps):
                a(f"v_mov_b32 {t}, {v}")
            for v, t in zip(regs, tmps):
                a(f"{sw} {v}, {t}")
            for v, t in zip(regs, tmps):
                a(f"{op} {v}, {v}, {t}")

    def allreduce(op, v, t):
        for b in (8, 4, 2, 1):
            a(f"{op}_dpp {v}, {v}, {v} row_ror:{b} row_mask:0xf bank_mask:0xf")
        rows_reduce(op, [v], [t])

    def rne(dst, src):
        a(f"v_cvt_pk_bf16_f32 {dst}, {src}, {src}")
        a(f"v_lshlrev_b32 {dst}, 16, {dst}")

    def unpack(lo, hi, pk):
        a(f"v_lshlrev_b32 {lo}, 16, {pk}")
        a(f"v_and_b32 {hi}, 0xffff0000, {pk}")

    def check_loop(name, quads, issue, tok, emb=None, equads=(), clean=None, once=False):
        a(f"s_mov_b32 {sCNT}, 0")
        a.wait_vm(tok)
        stamp("first_" + name)
        a.label(f"L_chk_{name}")
        mn, mx = vA, vB_
        if equads:
            for qi, q in enumerate(equads):
                for k in range(4):
                    a(f"v_xor_b32 v{clean + 4*qi + k}, v{q+k}, {emb[k]}")
            regs = [f"v{clean + i}" for i in range(4 * len(equads))]
            acc = [mn, mx]
            a(f"v_or_b32 {mn}, {regs[0]}, {regs[1]}")
            a(f"v_or_b32 {mx}, {regs[2]}, {regs[3]}")
            for i in range(4, len(regs), 2):
                a(f"v_or3_b32 {acc[(i >> 1) & 1]}, {acc[(i >> 1) & 1]}, {regs[i]}, {regs[i+1]}")
            a(f"v_or_b32 {mn}, {mn}, {mx}")
            a(f"v_and_b32 {mn}, 0xff, {mn}")
        for qi, q in enumerate(quads):
            for k in (1, 3):
                if not equads and qi == 0 and k == 1:
                    a(f"v_xor_b32 {mn}, v{q+k}, {vTAG}")
                else:
                    a(f"v_bitop3_b32 {mn}, {mn}, v{q+k}, {vTAG} bitop3:0xf6")
        a(f"v_cmp_ne_u32 vcc, 0, {mn}")
        a(f"s_cbranch_vccz L_ok_{name}")
        if not once:
            a(f"s_add_u32 {sCNT}, {sCNT}, 1")
            a(f"s_cmp_gt_u32 {sCNT}, {limit}")
            a(f"s_cbranch_scc1 L_ok_{name}")
        sv = (a.vm_issued, a.vm_done)
        if a.vm_issued - a.vm_done > 40:
            a.vm_done = a.vm_issued - 40
            a("s_waitcnt vmcnt(40)")
        if equads and not quads:
            for qi, q in enumerate(equads):
                c = clean + 4 * qi
                a(f"v_or3_b32 {mn}, v{c}, v{c+1}, v{c+2}")
                a(f"v_or_b32 {mn}, {mn}, v{c+3}")
                a(f"v_or_b32_dpp {mn}, {mn}, {mn} quad_perm:[1,0,3,2] row_mask:0xf bank_mask:0xf")
                a(f"v_or_b32_dpp {mn}, {mn}, {mn} quad_perm:[2,3,0,1] row_mask:0xf bank_mask:0xf")
                a(f"v_and_b32 {mn}, 0xff, {mn}")
                a(f"v_cmp_ne_u32 vcc, 0, {mn}")
                a(f"s_cbranch_vccz L_skip_{name}{qi}")
                a("s_mov_b64 exec, vcc")
                issue(" sc1", [qi])
                a("s_mov_b64 exec, -1")
                a.label(f"L_skip_{name}{qi}")
        else:
            if equads:
                a(f"v_or_b32_dpp {mn}, {mn}, {mn} quad_perm:[1,0,3,2] row_mask:0xf bank_mask:0xf")
                a(f"v_or_b32_dpp {mn}, {mn}, {mn} quad_perm:[2,3,0,1] row_mask:0xf bank_mask:0xf")
                a(f"v_cmp_ne_u32 vcc, 0, {mn}")
            a("s_mov_b64 exec, vcc")
            issue(" sc1")
            a("s_mov_b64 exec, -1")
        if slp and name == "op":
            a(f"s_sleep {slp}")
        if once:
            a.label(f"L_ok_{name}")
            a("s_waitcnt vmcnt(0)")
            a.vm_issued = sv[0]
            a.vm_done = sv[0]
            return
        a("s_waitcnt vmcnt(0)")
        a.vm_issued, a.vm_done = sv
        a(f"s_branch L_chk_{name}")
        a.label(f"L_ok_{name}")
        if stamps and ("cnt_" + name) in stamps:
            lo, hi = STAMPS[stamps.index("cnt_" + name)]
            a(f"s_mov_b32 s{lo}, {sCNT}")
            a(f"s_mov_b32 s{hi}, 0")

    def tag_bytes(regs):
        for k in range(4):
            a(f"v_bfe_u32 {regs[k]}, {vTAG}, {8*k}, 8")

    a.raw(HEADER.rstrip())
    a.raw(f"; @launch grid=(256,1,1) block=(256,1,1) lds={LDS_BYTES}")
    a.raw('.amdgcn_target "amdgcn-amd-amdhsa--gfx950"')
    a.raw(".text")
    a.raw(f".globl {NAME}_kernel")
    a.raw(".p2align 8")
    a.raw(f".type {NAME}_kernel,@function")
    a.raw(f"{NAME}_kernel:")
    a("s_cmp_ge_u32 s2, 256")
    a("s_cbranch_scc1 L_end")
    a("s_load_dwordx16 s[16:31], s[0:1], 0")
    a("s_load_dwordx8 s[32:39], s[0:1], 64")
    a("s_load_dwordx2 s[40:41], s[0:1], 96")
    stamp("start")
    vW = "v56"; vW1 = "v57"; vPF = "v58"; vZ = "v59"
    a(f"s_getpc_b64 s[42:43]")
    a.label("L_pc")
    a(f"v_lshlrev_b32 {vPF}, 7, {vTID}")
    a(f"v_min_u32 {vPF}, L_end-L_pc, {vPF}")
    if "nopf" not in dbg:
        a(f"global_load_dword {vPF}, {vPF}, s[42:43]")
    a(f"v_lshrrev_b32 {vA}, 6, {vTID}")
    a(f"v_and_b32 {vLANE}, 63, {vTID}")
    a(f"v_readfirstlane_b32 {sWAVE}, {vA}")
    a(f"v_lshlrev_b32 {vL16}, 4, {vLANE}")
    a(f"v_lshl_add_u32 {vV}, {vA}, 11, {vL16}")
    a(f"s_bfe_u32 {sKQ}, s2, 0x20001")
    a(f"s_and_b32 {sCG}, s2, 1")
    a(f"s_lshl_b32 {sCG}, {sCG}, 5")
    a(f"s_lshr_b32 {sT0}, s2, 3")
    a(f"s_add_u32 {sCG}, {sCG}, {sT0}")
    a(f"v_lshrrev_b32 {vB_}, 3, {vTID}")
    a(f"v_and_b32 {vC}, 7, {vB_}")
    a(f"v_lshl_add_u32 {vB_}, {vA}, 6, {vC}")
    a(f"s_lshl_b32 {sT0}, {sKQ}, 8")
    a(f"v_add_u32 {vB_}, {sT0}, {vB_}")
    a(f"v_and_b32 {vC}, 0x70, {vL16}")
    a(f"v_lshl_add_u32 {vW}, {vB_}, 13, {vC}")
    if wsplit == 3:
        units, nxt_u = {}, 0
        for x in sorted(range(8), key=lambda x: -quota[x]):
            units[x] = nxt_u if quota[x] else 0
            nxt_u += quota[x]
        assert nxt_u == 8
        UT = sum(units[x] << (4 * x) for x in range(8))
        QT = sum(quota[x] << (4 * x) for x in range(8))
        a(f"s_and_b32 {sT1}, s2, 7")
        a(f"s_lshl_b32 {sT1}, {sT1}, 2")
        a(f"s_lshr_b32 {sU}, {hex(UT)}, {sT1}")
        a(f"s_lshr_b32 {sQT}, {hex(QT)}, {sT1}")
        a(f"s_bfe_u32 {sKQ1}, {sU}, 0x20001")
        a(f"s_sub_u32 {sT1}, {sKQ1}, {sKQ}")
        a(f"s_lshl_b32 {sT1}, {sT1}, 8")
        a(f"v_add_u32 {vB_}, {sT1}, {vB_}")
    a(f"v_mul_u32_u24 {vW1}, 7168, {vB_}")
    a(f"v_add_u32 {vW1}, {vW1}, {vC}")
    a(f"v_mov_b32 {vZ}, 0")
    a(f"s_lshl_b32 {sT2}, {sCG}, 7")
    a(f"s_lshl_b32 {sT3}, {sWAVE}, 13")
    a(f"s_mov_b32 s{rWQ+2}, 0x800000")
    a(f"s_mov_b32 s{rWQ+3}, 0x20000")
    a(f"s_mov_b32 s{rW1+3}, 0x20000")
    stamp("pre")
    a.lgkm(0)
    stamp("args")
    X = S0
    a(f"global_load_dwordx4 {vq(X)}, {vV}, {sp(pX)}")
    tX = a(f"global_load_dwordx4 {vq(X+4)}, {vV}, {sp(pX)} offset:1024")
    a(f"s_mov_b64 s[{rWQ}:{rWQ+1}], {sp(pWQ)}")
    a(f"s_mov_b64 s[{rW1}:{rW1+1}], {sp(pW1)}")
    for j in range(8):
        a(f"s_add_u32 m0, {sT3}, {L_WQ + j*1024}")
        a(f"s_add_u32 {sT1}, {sT2}, {j*8*8192}")
        a(f"buffer_load_dwordx4 {vW}, {srd(rWQ)}, {sT1} offen{wnt} lds")
    stamp("wq_iss")
    if wsplit == 3:
        a(f"s_lshr_b32 {sT1}, s2, 3")
        a(f"s_lshr_b32 {sT0}, s2, 6")
        a(f"s_sub_u32 {sCG1}, {sT1}, {sT0}")
        a(f"s_and_b32 {sT0}, {sT1}, 7")
        a(f"s_cmp_gt_u32 {sT0}, 3")
        a(f"s_subb_u32 {sCG1}, {sCG1}, 0")
        a(f"s_lshl_b32 {sCG1}, {sCG1}, 1")
        a(f"s_and_b32 {sT1}, {sU}, 1")
        a(f"s_add_u32 {sCG1}, {sCG1}, {sT1}")
        a(f"s_and_b32 {sQT}, {sQT}, 3")
        a(f"s_cmp_eq_u32 {sT0}, 3")
        a(f"s_cselect_b32 {sQT}, 0, {sQT}")
        a(f"s_cmp_gt_u32 {sQT}, 0")
        a(f"s_cselect_b32 s{rW1+2}, 0x700000, 0")
        a(f"s_cselect_b32 {sCG1}, {sCG1}, 60")
    elif wsplit == 0:
        a(f"s_mov_b32 {sCG1}, {sCG}")
        a(f"s_cmp_lt_u32 {sCG}, 56")
        a(f"s_cselect_b32 s{rW1+2}, 0x700000, 0")
    else:
        a(f"s_lshr_b32 {sT0}, {sCG}, 3")
        a(f"s_sub_u32 {sCG1}, {sCG}, {sT0}")
        a(f"s_and_b32 {sT0}, {sCG}, 7")
        a(f"s_cmp_gt_u32 {sT0}, 3")
        a(f"s_subb_u32 {sCG1}, {sCG1}, 0")
        if wsplit == 2:
            a(f"s_lshl_b32 {sCG1}, {sCG1}, 1")
            a(f"s_and_b32 {sT1}, s2, 1")
            a(f"s_cselect_b32 {sT0}, 3, {sT0}")
        a(f"s_cmp_lg_u32 {sT0}, 3")
        a(f"s_cselect_b32 s{rW1+2}, 0x700000, 0")
        a(f"s_cselect_b32 {sCG1}, {sCG1}, 60")
    a(f"s_lshl_b32 {sT2}, {sCG1}, 7")
    W1IM = [L_W1, L_W1B] if wsplit >= 2 else [L_W1]
    for k, lb in enumerate(W1IM):
        if k == 1 and wsplit == 3:
            a(f"s_cmp_gt_u32 {sQT}, 1")
            a(f"s_cselect_b32 s{rW1+2}, 0x700000, 0")
        for j in range(8):
            a(f"s_add_u32 m0, {sT3}, {lb + j*1024}")
            a(f"s_add_u32 {sT1}, {sT2}, {j*8*7168 + 128*k}")
            tW = a(f"buffer_load_dwordx4 {vW1}, {srd(rW1)}, {sT1} offen{wnt} lds")
    tE = a(f"global_load_dword {vTAG}, {vZ}, {sp(pWS)}")
    stamp("w_iss")
    a(f"v_bfe_u32 {vB_}, {vLANE}, 2, 2")
    a(f"v_bfe_u32 {vC}, {vLANE}, 1, 1")
    a(f"v_lshl_add_u32 {vB_}, {vC}, 2, {vB_}")
    a(f"v_lshlrev_b32 {vK}, 8, {vB_}")
    WSH = {"t2": 11, "t4": 12, "t8": 13, "g4": 12, "g2": 11, "gh": 16, "gm": 15, "gn": 14, "gu": 11, "gv": 11, "g8": 13}[kvmap]
    a(f"v_lshl_add_u32 {vK}, {vA}, {WSH}, {vK}")
    a(f"v_lshrrev_b32 {vB_}, 4, {vLANE}")
    a(f"v_lshl_add_u32 {vK}, {vB_}, 5, {vK}")
    a(f"v_and_b32 {vC}, 1, {vLANE}")
    a(f"v_lshl_add_u32 {vK}, {vC}, 4, {vK}")
    if xaff:
        a(f"s_and_b32 {sT0}, s2, 7")
        a(f"s_lshl_b32 {sT0}, {sT0}, 1")
        a(f"s_bfe_u32 {sT1}, s2, 0x10003")
        a(f"s_add_u32 {sT0}, {sT0}, {sT1}")
        a(f"s_lshr_b32 {sB}, {sT0}, 2")
        a(f"s_and_b32 {sHKV}, {sT0}, 3")
        a(f"s_lshr_b32 {sS}, s2, 4")
        if kvmap[0] == "g":
            a(f"s_mul_i32 {sROT}, {sT0}, {rotm}")
            a(f"s_lshl_b32 {sT0}, {sT0}, 22")
            if kvmap in ("gh", "gm", "gn"):
                nb = WSH - 12
                a(f"s_and_b32 {sT1}, {sS}, {(1 << nb) - 1}")
                a(f"s_lshl_b32 {sT1}, {sT1}, 12")
                a(f"s_lshr_b32 {sF0}, {sS}, {nb}")
                a(f"s_lshl_b32 {sF0}, {sF0}, {WSH + 2}")
                a(f"s_add_u32 {sT1}, {sT1}, {sF0}")
            else:
                a(f"s_lshl_b32 {sT1}, {sS}, {WSH + 2}")
            a(f"s_add_u32 {sT0}, {sT0}, {sT1}")
        else:
            a(f"s_lshl_b32 {sT0}, {sT0}, 4")
            a(f"s_add_u32 {sT0}, {sT0}, {sS}")
            a(f"s_lshl_b32 {sT0}, {sT0}, 18")
    else:
        a(f"s_lshr_b32 {sB}, s2, 6")
        a(f"s_bfe_u32 {sHKV}, s2, 0x20004")
        a(f"s_and_b32 {sS}, s2, 15")
        a(f"s_lshl_b32 {sT0}, s2, 18")
    a(f"s_add_u32 s{rK}, s{pK}, {sT0}")
    a(f"s_addc_u32 s{rK+1}, s{pK+1}, 0")
    a(f"s_add_u32 s{rV}, s{pV}, {sT0}")
    a(f"s_addc_u32 s{rV+1}, s{pV+1}, 0")
    a(f"s_lshr_b32 {sRG}, s2, 3")
    a(f"s_getreg_b32 {sLOC}, hwreg(HW_REG_XCC_ID, 0, 4)")
    for r in (rK, rV, rWO, rW2, rWS):
        a(f"s_mov_b32 s{r+3}, 0x20000")
    if kvmap[0] == "g":
        a(f"s_sub_u32 s{rK+2}, 0x400000, {sT1}")
        a(f"s_mov_b32 s{rV+2}, s{rK+2}")
    else:
        a(f"s_mov_b32 s{rK+2}, 0x40000")
        a(f"s_mov_b32 s{rV+2}, 0x40000")
    a(f"s_mov_b32 s{rWO+2}, 0x800000")
    a(f"s_mov_b32 s{rW2+2}, 0x700000")
    a(f"s_mov_b32 s{rWS+2}, {WS_SIZE}")
    for (r, p) in ((rWO, pWO), (rW2, pW2), (rWS, pWS)):
        a(f"s_mov_b64 s[{r}:{r+1}], {sp(p)}")

    vVV = vV
    tok = {}
    idx = {}

    def q_tile(kind, t):
        for u in range(4):
            for j in range(2):
                def f(u=u, j=j):
                    im = 0
                    if kvmap == "t2":
                        if j == 0:
                            a(f"s_mov_b32 {sF0}, {t*32768 + u*8192}")
                    elif kvmap == "t4":
                        im = (u & 1) * 2048
                        if j == 0 and not u & 1:
                            a(f"s_mov_b32 {sF0}, {t*32768 + (u >> 1)*16384}")
                    elif kvmap == "t8":
                        im = (u & 1) * 2048
                        if j == 0 and not u & 1:
                            a(f"s_mov_b32 {sF0}, {t*32768 + (u >> 1)*4096}")
                    elif kvmap == "g8":
                        im = (u & 1) * 2048
                        if j == 0 and not u & 1:
                            a(f"s_add_u32 {sF0}, {sROT}, {t}")
                            a(f"s_and_b32 {sF0}, {sF0}, 7")
                            a(f"s_lshl_b32 {sF0}, {sF0}, 19")
                            a(f"s_add_u32 {sF0}, {sF0}, {(u >> 1) * 4096}")
                    elif kvmap in ("gu", "gv"):
                        if j == 0:
                            if kvmap == "gu":
                                a(f"s_add_u32 {sF0}, {sROT}, {t}")
                                a(f"s_and_b32 {sF0}, {sF0}, 7")
                                a(f"s_lshl_b32 {sF0}, {sF0}, 19")
                                a(f"s_add_u32 {sF0}, {sF0}, {u << 17}")
                            else:
                                a(f"s_add_u32 {sF0}, {sROT}, {2*t + (u >> 1)}")
                                a(f"s_and_b32 {sF0}, {sF0}, 15")
                                a(f"s_lshl_b32 {sF0}, {sF0}, 18")
                                a(f"s_add_u32 {sF0}, {sF0}, {(u & 1) << 17}")
                    elif kvmap in ("g4", "gh", "gm", "gn"):
                        im = (u & 1) * 2048
                        if j == 0 and not u & 1:
                            a(f"s_add_u32 {sF0}, {sROT}, {(step * (2*t + (u >> 1))) & 15}")
                            a(f"s_and_b32 {sF0}, {sF0}, 15")
                            a(f"s_lshl_b32 {sF0}, {sF0}, 18")
                    elif kvmap == "g2":
                        if j == 0:
                            a(f"s_add_u32 {sF0}, {sROT}, {4*t + u}")
                            a(f"s_and_b32 {sF0}, {sF0}, 31")
                            a(f"s_lshl_b32 {sF0}, {sF0}, 17")
                    if kind == "K":
                        tok[f"K{t}"] = a(f"buffer_load_dwordx4 {aq(32*t + 8*u + 4*j)}, {vK}, {srd(rK)}, {sF0} offen offset:{im + j*128}{nt}")
                    else:
                        tok[f"V{t}"] = a(f"buffer_load_dwordx4 {vq(V0 + 32*(t % 4) + 8*u + 4*j)}, {vVV}, {srd(rV)}, {sF0} offen offset:{im + j*1024}{nt}")
                a.fq.append(f)
        idx[f"{kind}{t}"] = len(a.fq)

    def q_w(name, r, lb, rows):
        for j in range(rows // 4):
            def f(j=j):
                if j == 0:
                    a(f"s_lshl_b32 {sF1}, {sRG}, 2")
                    a(f"s_add_u32 {sF1}, {sF1}, {sWAVE}")
                    a(f"s_mul_i32 {sF1}, {sF1}, {rows*2048}")
                    if "rotw" in dbg:
                        a(f"s_lshl_b32 {sF0}, {sRG}, 8")
                        a(f"s_add_u32 {sF0}, {sF0}, {sW4C}")
                        a(f"s_and_b32 {sF0}, {sF0}, 0x7ff")
                        a(f"s_add_u32 {sF1}, {sF1}, {sF0}")
                    else:
                        a(f"s_add_u32 {sF1}, {sF1}, {sW4C}")
                a(f"s_add_u32 m0, {sT3}, {lb + j*1024}")
                a(f"s_add_u32 {sF0}, {sF1}, {j*8192}")
                tok[name] = a(f"buffer_load_dwordx4 {vW4b if j & 2 else vW4}, {srd(r)}, {sF0} offen{wnt} lds")
            a.fq.append(f)
        idx[name] = len(a.fq)

    GM = [S0 + 8*t + 4 for t in range(8)]
    vW4b, vCW0, vCW1, vCWA = vB1, "v60", "v61", "v62"
    vPR, vPRD = vTR, vMX

    GMO = 52

    def issue_ml(fl, js=range(9)):
        t = None
        for j in js:
            if j == 8:
                t = a(f"buffer_load_dwordx4 {vq(GMW)}, {vMW}, {srd(rWS)}, {sMLG} offen{fl}")
                continue
            so = sMLG if j < 4 else sMLO
            t = a(f"buffer_load_dwordx4 {vq(GM[j])}, {vL16}, {srd(rWS)}, {so} offen offset:{1024*(j&3)}{fl}")
        return t

    GMW, vMW = S0, vL

    def q_ml():
        for j in range(9):
            def f(j=j):
                tok["ML"] = issue_ml(" sc1", [j])
            a.fq.append(f)
        a.fq.append(lambda: a(f"buffer_load_dwordx2 v[60:61], {vCWA}, {srd(rWS)}, 0 offen sc1"))
        a.fq.append(lambda: tok.__setitem__("FH", issue_fh(" sc1")))
        idx["ML"] = len(a.fq)

    GF, vFG = S0 + 8, vK

    def issue_fh(fl):
        return a(f"buffer_load_dwordx4 {vq(GF)}, {vFG}, {srd(rWS)}, 0 offen{fl}")

    for t in range(8):
        q_tile("K", t)
    for t in range(8):
        if t == mlpos and "noqml" not in dbg:
            q_ml()
        if t == ppos and probe:
            a.fq.append(lambda: tok.__setitem__("PR", a(f"buffer_load_dword {vPRD}, {vPR}, {srd(rWS)}, {sOPG} offen sc1")))
        if t == w2pos:
            q_w("W2", rW2, L_W2, 28)
        q_tile("V", t)
    a.fq.append(lambda: a(f"global_load_short_d16_hi {vX}, {vOUT}, {sp(pX)}"))
    a.fq.append(lambda: a(f"global_load_short_d16_hi {vB2}, {vB2}, {sp(pB2)}"))
    if w2pos == 8:
        q_w("W2", rW2, L_W2, 28)
    idx["PRE"] = len(a.fq)
    q_w("WO", rWO, L_WO, 32)

    def wait(name):
        a.flush(idx[name])
        a.wait_vm(tok[name])

    a(f"s_mov_b32 {sSELLO}, 0x05040100")
    a(f"s_mov_b32 {sSELHI}, 0x07060302")
    a(f"s_mov_b32 {sSCALE}, {f32(128 ** -0.5)}")
    a(f"s_mov_b32 {sLOG2E}, {f32(1.4426950408889634)}")
    a(f"v_lshrrev_b32 {vA}, 4, {vLANE}")
    a(f"v_lshlrev_b32 {vSQ}, 4, {vA}")
    a(f"v_bfe_u32 {vB_}, {vLANE}, 2, 2")
    a(f"v_lshl_add_u32 {vB_}, {vA}, 3, {vB_}")
    a(f"v_and_b32 {vC}, 3, {vLANE}")
    a(f"v_lshlrev_b32 {vC}, 3, {vC}")
    a(f"v_lshl_add_u32 {vTR}, {vB_}, 7, {vC}")
    a(f"v_and_b32 {vB_}, 15, {vLANE}")
    if qemb:
        a(f"v_lshl_add_u32 {vPUB}, {vB_}, 16, {vSQ}")
    else:
        a(f"v_lshlrev_b32 {vB_}, 3, {vB_}")
        a(f"v_lshl_add_u32 {vPUB}, {vA}, 17, {vB_}")
    a(f"v_and_b32 {vB_}, 0xf0, {vL16}")
    a(f"v_lshlrev_b32 {vC}, 5, {vA}")
    a(f"v_xor_b32 {vB_}, {vB_}, {vC}")
    a(f"v_lshl_add_u32 {vW4}, {vA}, 11, {vB_}")
    a(f"s_and_b32 {sW4C}, s2, 7")
    a(f"s_lshl_b32 {sW4C}, {sW4C}, 8")
    for i in range(4):
        a(f"v_mov_b32 v{D0+i}, 0")
    a(f"v_add_u32 {vA}, {sT3}, {vL16}")
    a(f"v_add_u32 {vA}, {L_W2 + 7168}, {vA}")
    a(f"ds_write_b128 {vA}, {vq(D0)}")

    XF = S0 + 16
    DV = S0 + 32
    a.wait_vm(tX)
    stamp("x")

    def layernorm(ldsoff):
        if "noln" in dbg:
            return
        s_, m_, r_, t_ = "v112", "v113", "v114", "v115"
        for i in range(8):
            unpack(f"v{XF+2*i}", f"v{XF+2*i+1}", f"v{X+i}")
        for i in range(8):
            a(f"v_add_f32 v{DV+i}, v{XF+2*i}, v{XF+2*i+1}")
        for i in range(4):
            a(f"v_add_f32 v{DV+i}, v{DV+i}, v{DV+4+i}")
        a(f"v_add_f32 v{DV}, v{DV}, v{DV+2}")
        a(f"v_add_f32 v{DV+1}, v{DV+1}, v{DV+3}")
        a(f"v_add_f32 {m_}, v{DV}, v{DV+1}")
        allreduce("v_add_f32", m_, t_)
        a(f"v_mul_f32 {m_}, {f32(1.0/1024)}, {m_}")
        for i in range(16):
            a(f"v_sub_f32 v{DV+i}, v{XF+i}, {m_}")
        a(f"v_mul_f32 {s_}, v{DV}, v{DV}")
        a(f"v_mul_f32 {r_}, v{DV+1}, v{DV+1}")
        for i in range(2, 16, 2):
            a(f"v_fmac_f32 {s_}, v{DV+i}, v{DV+i}")
            a(f"v_fmac_f32 {r_}, v{DV+i+1}, v{DV+i+1}")
        a(f"v_add_f32 {s_}, {s_}, {r_}")
        allreduce("v_add_f32", s_, t_)
        a(f"v_mul_f32 {s_}, {f32(1.0/1024)}, {s_}")
        rne(m_, m_)
        rne(s_, s_)
        a(f"v_add_f32 {s_}, {f32(1e-5)}, {s_}")
        rne(s_, s_)
        a(f"v_sqrt_f32 {s_}, {s_}")
        rne(s_, s_)
        a(f"v_rcp_f32 {r_}, {s_}")
        for i in range(16):
            a(f"v_sub_f32 v{DV+i}, v{XF+i}, {m_}")
        a.lgkm(0)
        for i in range(8):
            a(f"v_cvt_pk_bf16_f32 v{X+i}, v{DV+2*i}, v{DV+2*i+1}")
        for i in range(8):
            unpack(f"v{DV+2*i}", f"v{DV+2*i+1}", f"v{X+i}")
        for i in range(16):
            a(f"v_mul_f32 v{XF+i}, v{DV+i}, {r_}")
        for i in range(16):
            a(f"v_fma_f32 v{DV+i}, -v{XF+i}, {s_}, v{DV+i}")
        for i in range(16):
            a(f"v_fma_f32 v{XF+i}, v{DV+i}, {r_}, v{XF+i}")
        for i in range(8):
            a(f"v_cvt_pk_bf16_f32 v{X+i}, v{XF+2*i}, v{XF+2*i+1}")
        a(f"v_add_u32 {t_}, {ldsoff}, {vV}")
        a(f"ds_write_b128 {t_}, {vq(X)}")
        a(f"ds_write_b128 {t_}, {vq(X+4)} offset:1024")

    a.cap = cap0
    a.grace_n = grace
    a.feed(idx["K0"], P["ln"])
    layernorm(L_XN)
    a.flush(idx["K0"])
    a.feed(idx["K1"], P["ln"])
    layernorm(L_Y)
    a.nofeed()
    a.flush(idx["K1"])
    stamp("ln")
    if WSH != 11:
        a(f"s_lshl_b32 {sT0}, {sWAVE}, {WSH}")
        a(f"v_add_u32 {vV}, {sT0}, {vL16}")
    if "now" not in dbg.split():
        a.wait_vm(tE)
    a(f"s_mov_b32 {sT0}, 1664525")
    a(f"v_mul_lo_u32 {vA}, {vTAG}, {sT0}")
    a(f"v_add_u32 {vA}, 1013904223, {vA}")
    a(f"v_lshrrev_b32 {vB_}, 13, {vA}")
    a(f"v_xor_b32 {vA}, {vA}, {vB_}")
    a(f"v_and_b32 {vA}, 0x7e7e7e7e, {vA}")
    a(f"v_or_b32 {vA}, 0x01010101, {vA}")
    a(f"v_add_u32 {vTAG}, {vTAG}, {vA}")
    vTR1, vBX = "v116", "v117"
    a(f"s_lshl_b32 {sT0}, {sWAVE}, 5")
    a(f"v_add_u32 {vTR1}, {sT0}, {vTR}")
    a(f"v_and_b32 {vA}, 3, {vLANE}")
    a(f"v_lshlrev_b32 {vA}, 11, {vA}")
    a(f"v_add_u32 {vA}, {vA}, {vSQ}")
    a(f"s_lshl_b32 {sT0}, {sKQ}, 9")
    a(f"s_add_u32 {sT0}, {sT0}, {L_XN}")
    a(f"v_add_u32 {vBX}, {sT0}, {vA}")
    vBY = vBX
    if wsplit == 3:
        vBY = "v125"
        a(f"s_lshl_b32 {sT0}, {sKQ1}, 9")
        a(f"s_add_u32 {sT0}, {sT0}, {L_XN}")
        a(f"v_add_u32 {vBY}, {sT0}, {vA}")
    a(f"v_add_u32 v118, 32768, {vTR1}")
    a.lgkm(0)
    a("s_barrier")
    stamp("w")
    mats = [(vTR1, 0, 0), (vTR1, L_W1, 1)] + ([("v118", L_W1B - 32768, 1)] if wsplit >= 2 else [])
    AW = [V0, V0 + 32, V0 + 64]
    BW = [V0 + 96, S0]
    ACC = [D0, D0 + 4, D0 + 8]
    a.cap = cap
    a.feed(idx["K2"], P["proj"])
    for mi, (vt, lw, bx) in enumerate([] if "noproj" in dbg else mats):
        for ks in range(8):
            for hh in range(2):
                a(f"ds_read_b64_tr_b16 {vq(AW[mi] + 4*ks + 2*hh, 2)}, {vt} offset:{lw + ks*4096 + hh*512}")
            if mi < 2:
                a(f"ds_read_b128 {vq(BW[bx] + 4*ks)}, {vBY if bx else vBX} offset:{8192*bx + ks*64}")
            if ks == 3:
                a.lgkm(0)
        a.lgkm(0)
        for ks in range(8):
            c = "0" if ks == 0 else vq(ACC[mi])
            if mi == 0 and qemb:
                a(f"v_mfma_f32_16x16x32_bf16 {vq(ACC[mi])}, {vq(AW[mi] + 4*ks)}, {vq(BW[bx] + 4*ks)}, {c}")
            else:
                a(f"v_mfma_f32_16x16x32_bf16 {vq(ACC[mi])}, {vq(BW[bx] + 4*ks)}, {vq(AW[mi] + 4*ks)}, {c}")
    a.nofeed()
    PB = D0 + 12
    nm = len(mats)
    TB1 = ["v120", "v121", "v122", "v124"]
    tag_bytes(TB1)
    a(f"v_mov_b32 v{PB+1}, {vTAG}")
    a(f"s_lshl_b32 {sT0}, {sKQ}, {15 - qemb}")
    a(f"s_lshl_b32 {sT1}, {sCG}, {9 - qemb}")
    a(f"s_add_u32 {sT0}, {sT0}, {sT1}")
    a(f"s_lshl_b32 {sT1}, {sWAVE}, {7 - qemb}")
    a(f"s_add_u32 {sT0}, {sT0}, {sT1}")
    a(f"s_add_u32 {sT0}, {sT0}, {QP}")
    a(f"s_lshl_b32 {sT1}, {sKQ1 if wsplit == 3 else sKQ}, 16")
    a(f"s_lshl_b32 {sT2}, {sCG1}, 10")
    a(f"s_add_u32 {sT1}, {sT1}, {sT2}")
    a(f"s_lshl_b32 {sT2}, {sWAVE}, 8")
    a(f"s_add_u32 {sT1}, {sT1}, {sT2}")
    a(f"s_add_u32 {sT1}, {sT1}, {HP}")
    a(f"s_movk_i32 {sT2}, 0xff")
    if not qemb:
        a(f"v_mov_b32 v{PB}, v{ACC[0]}")
        for r in range(1, 4):
            a(f"v_mov_b32_dpp v{PB}, v{ACC[0] + r} quad_perm:[0,1,2,3] row_mask:{hex(1 << r)} bank_mask:0xf")
    for mi in range(1 - qemb, nm):
        for r in range(4):
            a(f"v_add_u32 v{ACC[mi] + r}, 0x80, v{ACC[mi] + r}")
        for r in range(4):
            a(f"v_bfi_b32 v{ACC[mi] + r}, {sT2}, {TB1[r]}, v{ACC[mi] + r}")
    if qemb:
        a(f"s_mov_b32 exec_lo, 0x000f000f")
        a(f"s_mov_b32 exec_hi, 0x000f000f")
        a(f"buffer_store_dwordx4 {vq(ACC[0])}, {vPUB}, {srd(rWS)}, {sT0} offen sc1")
    else:
        a(f"buffer_store_dwordx2 {vq(PB, 2)}, {vPUB}, {srd(rWS)}, {sT0} offen sc1")
    a(f"s_mov_b64 exec, 0xffff")
    a(f"buffer_store_dwordx4 {vq(ACC[1])}, {vL16}, {srd(rWS)}, {sT1} offen sc1")
    if nm == 3:
        if wsplit == 3:
            a(f"s_cmp_gt_u32 {sQT}, 1")
            a(f"s_cselect_b32 {sT1}, {sT1}, 0x7f000000")
        a(f"buffer_store_dwordx4 {vq(ACC[2])}, {vL16}, {srd(rWS)}, {sT1} offen offset:1024 sc1")
    a(f"s_lshl_b32 {sT0}, {sW4C}, 4")
    a(f"s_lshl_b32 {sT1}, {sRG}, 7")
    a(f"s_add_u32 {sT0}, {sT0}, {sT1}")
    a(f"s_add_u32 {sT0}, {sT0}, {RG}")
    a(f"v_mov_b32 v{PB+6}, {sLOC}")
    a(f"v_mov_b32 v{PB+7}, {vTAG}")
    a(f"v_lshlrev_b32 {vA}, 3, {vLANE}")
    if "norg" not in dbg:
        a(f"buffer_store_dwordx2 {vq(PB+6, 2)}, {vA}, {srd(rWS)}, {sT0} offen sc1")
    a(f"s_mov_b64 exec, -1")
    stamp("qpub")
    vLC = "v118"; vT16 = "v119"; vFH = "v123"
    a(f"v_and_b32 {vA}, 15, {vLANE}")
    a(f"v_min_u32 {vA}, 13, {vA}")
    a(f"s_mul_i32 {sT0}, s2, 14")
    a(f"v_add_u32 {vA}, {sT0}, {vA}")
    a(f"v_lshlrev_b32 {vFH}, 4, {vA}")
    a(f"v_lshl_add_u32 {vLC}, {vSQ}, 12, {vFH}")
    a(f"v_lshlrev_b32 {vA}, 1, {vA}")
    a(f"global_load_short_d16_hi {vB1}, {vA}, {sp(pB1)}")
    a(f"v_lshlrev_b32 {vT16}, 4, {vTID}")
    GQ, GH0, GH = S0, S0 + 32, S0 + 36
    NQ = 4 if qemb else 8
    if qemb:
        GH0 = GQ + 16

    def issue_qh(fl, js=range(NQ + 1)):
        t = None
        for j in js:
            if j < NQ:
                a(f"s_add_u32 {sT1}, {sT0}, {j*16384 if qemb else (j >> 1)*32768 + (j & 1)*4096}")
                t = a(f"buffer_load_dwordx4 {vq(GQ + 4*j)}, {vT16}, {srd(rWS)}, {sT1} offen{fl}")
            else:
                t = a(f"buffer_load_dwordx4 {vq(GH0)}, {vLC}, {srd(rWS)}, {sT2} offen{fl}")
        return t

    a(f"s_lshl_b32 {sT0}, {sB}, {17 - qemb}")
    a(f"s_lshl_b32 {sT1}, {sHKV}, {13 - qemb}")
    a(f"s_add_u32 {sT0}, {sT0}, {sT1}")
    a(f"s_add_u32 {sT0}, {sT0}, {QP}")
    a(f"s_mov_b32 {sT2}, {HP}")
    order = [f"K{t}" for t in range(8)] + [f"V{t}" for t in range(8)]
    a.flush(idx[order[gpos - 1]])
    a.room(9)
    if "noq" not in dbg:
        tG = issue_qh(fq)
    a.flush(idx[order[gpos - 1 + gafter]])
    stamp("g_iss")
    if "noq" not in dbg:
      if qemb:
        check_loop("qh", [], issue_qh, tG, emb=TB1, equads=[GQ + 4*i for i in range(5)], clean=GQ + 20)
      else:
        check_loop("qh", [GQ + 4*i for i in range(8)], issue_qh, tG, emb=TB1, equads=[GH0], clean=GH)
    stamp("g_ok")
    a.cap = capq or cap
    base = min(a.fi, idx[lqk] - 8)
    a.feed(base + 8, P["qh"])
    if qemb:
        GQ += 20
        for r in range(4):
            a(f"v_add_f32 v{GQ+r}, v{GQ+r}, v{GQ+4+r}")
            a(f"v_add_f32 v{GQ+8+r}, v{GQ+8+r}, v{GQ+12+r}")
        for r in range(4):
            a(f"v_add_f32 v{GQ+r}, v{GQ+r}, v{GQ+8+r}")
        a(f"v_cvt_pk_bf16_f32 v{GQ}, v{GQ}, v{GQ+1}")
        a(f"v_cvt_pk_bf16_f32 v{GQ+1}, v{GQ+2}, v{GQ+3}")
        a(f"v_lshlrev_b32 {vA}, 3, {vTID}")
        a(f"v_add_u32 {vA}, {L_Q}, {vA}")
        a(f"ds_write_b64 {vA}, {vq(GQ, 2)}")
    else:
        for hf in range(2):
            for c in (0, 2):
                r = GQ + 4*hf + c
                a(f"v_add_f32 v{r}, v{r}, v{r+8}")
                a(f"v_add_f32 v{r+16}, v{r+16}, v{r+24}")
            for c in (0, 2):
                r = GQ + 4*hf + c
                a(f"v_add_f32 v{r}, v{r}, v{r+16}")
            a(f"v_cvt_pk_bf16_f32 v{GQ+4*hf}, v{GQ+4*hf}, v{GQ+4*hf+2}")
        a(f"v_lshlrev_b32 {vA}, 2, {vTID}")
        a(f"v_add_u32 {vA}, {L_Q}, {vA}")
        a(f"ds_write_b32 {vA}, v{GQ}")
        a(f"ds_write_b32 {vA}, v{GQ+4} offset:1024")
    U = [f"v{GH+r}" for r in range(4)]
    T = [f"v{GH+4+r}" for r in range(4)]
    b0 = f"v{GH+8}"
    rows_reduce("v_add_f32", U, T)
    a(f"v_and_b32 {vB1}, 0xffff0000, {vB1}")
    for k in range(2):
        a(f"v_cvt_pk_bf16_f32 {T[k]}, {U[2*k]}, {U[2*k+1]}")
    for k in range(2):
        unpack(U[2*k], U[2*k+1], T[k])
    for u in U:
        a(f"v_add_f32 {u}, {u}, {vB1}")
    for k in range(2):
        a(f"v_cvt_pk_bf16_f32 {T[k]}, {U[2*k]}, {U[2*k+1]}")
    for k in range(2):
        unpack(U[2*k], U[2*k+1], T[k])
    c1 = -2.0 * 0.7978845608028654 * 1.4426950408889634
    c2 = c1 * 0.044715
    a(f"v_mov_b32 {b0}, {f32(c1)}")
    a(f"s_mov_b32 {sT0}, {f32(c2)}")
    UT = list(zip(U, T))
    for (u, t) in UT:
        a(f"v_mul_f32 {t}, {u}, {u}")
    for (u, t) in UT:
        a(f"v_fma_f32 {t}, {t}, {sT0}, {b0}")
    for (u, t) in UT:
        a(f"v_mul_f32 {t}, {u}, {t}")
    for (u, t) in UT:
        a(f"v_exp_f32 {t}, {t}")
    for (u, t) in UT:
        a(f"v_add_f32 {t}, 1.0, {t}")
    for (u, t) in UT:
        a(f"v_rcp_f32 {t}, {t}")
    for (u, t) in UT:
        a(f"v_mul_f32 {t}, {u}, {t}")
    a(f"v_cvt_pk_bf16_f32 {U[0]}, {T[0]}, {T[1]}")
    a(f"v_cvt_pk_bf16_f32 {U[2]}, {T[2]}, {T[3]}")
    a(f"v_mov_b32 {U[1]}, {vTAG}")
    a(f"v_mov_b32 {U[3]}, {vTAG}")
    a.nofeed()
    a(f"s_cmp_eq_u32 {sWAVE}, 0")
    a(f"s_mov_b32 {sT1}, {FH}")
    a(f"s_cselect_b32 {sT0}, {sT1}, 0x7f000000")
    a(f"v_xor_b32 {vW4b}, 0x80, {vW4}")
    a.nofeed()
    a(f"s_mov_b64 exec, 0x3fff")
    a.room(1)
    a(f"buffer_store_dwordx4 {vq(GH)}, {vFH}, {srd(rWS)}, {sT0} offen sc1")
    a(f"s_mov_b64 exec, -1")
    a(f"v_and_b32 {vA}, 7, {vLANE}")
    a(f"v_lshlrev_b32 {vA}, 8, {vA}")
    a(f"v_lshl_add_u32 {vA}, {vSQ}, 1, {vA}")
    a(f"v_bfe_u32 {vC}, {vLANE}, 3, 1")
    a(f"v_lshl_add_u32 {vA}, {vC}, 4, {vA}")
    a(f"v_add_u32 {vA}, {L_Q}, {vA}")
    a.nofeed()
    a.flush(base + 8)
    a.lgkm(0)
    a("s_barrier")
    a(f"ds_read_b128 {vq(Q0)}, {vA}")
    a(f"ds_read_b128 {vq(Q0+4)}, {vA} offset:128")
    a(f"v_mov_b32 {vMX}, 0xff800000")
    a.lgkm(0)

    def qk_mfma(t):
        if "noqk" in dbg:
            return
        d = D0 + 16 * (t & 1)
        wait(f"K{t}")
        for j in range(2):
            for u in range(4):
                c = "0" if j == 0 else vq(d + 4*u)
                a(f"v_mfma_f32_16x16x32_bf16 {vq(d + 4*u)}, {aq(32*t + 8*u + 4*j)}, {vq(Q0 + 4*j)}, {c}")

    def qk_post(t):
        if "nosm" in dbg:
            return
        d = D0 + 16 * (t & 1)
        s = S0 + 8 * t
        for u in range(4):
            for tt in range(2):
                a(f"v_add_f32_dpp v{s + 2*u + tt}, v{d + 4*u + 2*tt + 1}, v{d + 4*u + 2*tt} row_ror:8 row_mask:0xf bank_mask:0xf")
        for u in range(4):
            a(f"v_cvt_pk_bf16_f32 v{T0+u}, v{s+2*u}, v{s+2*u+1}")
        for u in range(4):
            unpack(f"v{s+2*u}", f"v{s+2*u+1}", f"v{T0+u}")
        for i in range(8):
            a(f"v_mul_f32 v{s+i}, {sSCALE}, v{s+i}")
        for u in range(4):
            a(f"v_cvt_pk_bf16_f32 v{T0+u}, v{s+2*u}, v{s+2*u+1}")
        for u in range(4):
            unpack(f"v{s+2*u}", f"v{s+2*u+1}", f"v{T0+u}")
        for u in range(4):
            a(f"v_max3_f32 {vMX}, {vMX}, v{s+2*u}, v{s+2*u+1}")

    a.feed(idx[lqk], P["qk"])
    qk_mfma(0)
    for t in range(8):
        if t < 7:
            if t == 5:
                a.flush(idx[lqk])
            qk_mfma(t + 1)
        qk_post(t)
    stamp("qk")
    a.feed(idx[lexp], P["exp"])
    vNM = f"v{T0+5}"; vL2 = f"v{T0+6}"
    rows_reduce("v_max_f32", [vMX], [vNM])
    a(f"v_mul_f32 {vNM}, {sLOG2E}, {vMX}")
    a(f"v_mov_b32 {vL}, 0")
    a(f"v_mov_b32 {vL2}, 0")
    for t in range(0 if "nosm" in dbg else 8):
        s = S0 + 8 * t
        for i in range(8):
            a(f"v_fma_f32 v{s+i}, v{s+i}, {sLOG2E}, -{vNM}")
        for i in range(8):
            a(f"v_exp_f32 v{s+i}, v{s+i}")
        for u in range(4):
            a(f"v_add_f32 {vL}, {vL}, v{s+2*u}")
            a(f"v_add_f32 {vL2}, {vL2}, v{s+2*u+1}")
        for u in range(4):
            a(f"v_cvt_pk_bf16_f32 v{s+u}, v{s+2*u}, v{s+2*u+1}")
    a(f"v_add_f32 {vL}, {vL}, {vL2}")
    rows_reduce("v_add_f32", [vL], [vL2])
    a(f"s_lshl_b32 {sT0}, {sB}, 2")
    a(f"s_add_u32 {sT0}, {sT0}, {sHKV}")
    a(f"s_lshl_b32 {sMLG}, {sT0}, 13")
    a(f"s_add_u32 {sMLG}, {sMLG}, {ML}")
    a(f"s_lshl_b32 {sT0}, {sS}, 9")
    a(f"s_lshl_b32 {sT1}, {sWAVE}, 7")
    a(f"s_add_u32 {sT0}, {sT0}, {sT1}")
    a(f"s_add_u32 {sT0}, {sT0}, {sMLG}")
    a.nofeed()
    a(f"s_cmp_eq_u32 {sWAVE}, {7 if 'noml' in dbg else 0}")
    a(f"s_cselect_b32 {sMLG}, {sMLG}, 0x7f000000")
    a(f"s_add_u32 {sMLO}, {sMLG}, 4096")
    a(f"v_mov_b32 v{D0}, {vMX}")
    a(f"v_mov_b32 v{D0+1}, {vTAG}")
    a(f"v_mov_b32 v{D0+2}, {vL}")
    a(f"v_mov_b32 v{D0+3}, {vTAG}")
    a.nofeed()
    a(f"s_mov_b64 exec, 0xff")
    a.room(1)
    if "nomls" not in dbg:
        a(f"buffer_store_dwordx4 {vq(D0)}, {vL16}, {srd(rWS)}, {sT0} offen sc1")
    a(f"s_mov_b64 exec, -1")
    a.feed(idx[lexp], P["exp"])
    a(f"s_lshl_b32 {sT0}, {sS}, 9")
    a(f"v_and_b32 {vMW}, 0x1f0, {vL16}")
    a(f"v_add_u32 {vMW}, {sT0}, {vMW}")
    vRW = f"v{T0}"; vRR = f"v{T0+1}"; vOP = f"v{T0+2}"; vOW = f"v{T0+3}"; vFW = f"v{T0+7}"
    a(f"v_lshrrev_b32 {vA}, 7, {vTR}")
    a(f"v_and_b32 {vB_}, 3, {vA}")
    a(f"v_bfe_u32 {vC}, {vA}, 3, 1")
    a(f"v_lshl_or_b32 {vB_}, {vC}, 2, {vB_}")
    a(f"s_lshl_b32 {sT0}, {sWAVE}, 1")
    a(f"v_xor_b32 {vB_}, {sT0}, {vB_}")
    a(f"v_and_b32 {vC}, 0x18, {vTR}")
    a(f"v_lshl_add_u32 {vC}, {vB_}, 5, {vC}")
    a(f"v_lshl_add_u32 {vTR4}, {vA}, 8, {vC}")
    a(f"v_add_u32 {vTR4}, {L_WO}, {vTR4}")
    a(f"v_xor_b32 {vTR5}, 32, {vTR4}")
    a(f"v_and_b32 {vC}, 3, {vLANE}")
    a(f"v_lshlrev_b32 {vC}, 8, {vC}")
    a(f"v_add_u32 {vBO}, {vC}, {vSQ}")
    a(f"v_add_u32 {vBO}, {L_OL}, {vBO}")
    a(f"v_and_b32 {vC}, 7, {vLANE}")
    a(f"v_mul_u32_u24 {vRW}, {RED_H}, {vC}")
    a(f"v_lshl_add_u32 {vRW}, {vSQ}, 3, {vRW}")
    a(f"s_mul_i32 {sT0}, {sWAVE}, {RED_W}")
    a(f"v_add_u32 {vRW}, {sT0}, {vRW}")
    if tailopt:
        a(f"v_bfe_u32 {vC}, {vLANE}, 3, 1")
        a(f"v_lshl_add_u32 {vRW}, {vC}, 15, {vRW}")
    a(f"v_lshrrev_b32 {vC}, 5, {vTID}")
    a(f"v_mul_u32_u24 {vRR}, {RED_H}, {vC}")
    a(f"v_lshlrev_b32 {vMR}, 4, {vC}")
    a(f"v_add_u32 {vMR}, {L_F}, {vMR}")
    a(f"v_lshlrev_b32 {vOP}, 15, {vC}")
    a(f"v_and_b32 {vC}, 31, {vTID}")
    a(f"v_lshl_add_u32 {vRR}, {vC}, 4, {vRR}")
    a(f"v_lshl_add_u32 {vOP}, {vC}, 4, {vOP}")
    a(f"v_and_b32 {vFW}, 0x70, {vL16}")
    a(f"v_bfe_u32 {vC}, {vLANE}, 3, 2")
    a(f"v_lshl_add_u32 {vFW}, {vC}, 2, {vFW}")
    a(f"v_add_u32 {vFW}, {L_F}, {vFW}")
    a(f"v_bfe_u32 {vC}, {vLANE}, 3, 2")
    a(f"v_lshlrev_b32 {vOW}, 6, {vC}")
    a(f"v_and_b32 {vC}, 7, {vLANE}")
    a(f"v_lshl_add_u32 {vOW}, {vC}, 1, {vOW}")
    a(f"s_lshl_b32 {sT0}, {sWAVE}, 8")
    a(f"s_add_u32 {sT0}, {sT0}, {L_OL}")
    a(f"v_add_u32 {vOW}, {sT0}, {vOW}")
    a(f"v_lshrrev_b32 {vC}, 3, {vLANE}")
    a(f"v_and_b32 {vPUB}, 0x70, {vL16}")
    a(f"v_lshl_add_u32 {vPUB}, {vC}, 12, {vPUB}")
    a(f"v_and_b32 {vB2}, 3, {vLANE}")
    a(f"v_lshlrev_b32 {vB2}, 1, {vB2}")
    a(f"s_lshl_b32 {sT0}, {sRG}, 3")
    a(f"s_add_u32 {sT0}, {sT0}, {sW4C}")
    a(f"v_add_u32 {vB2}, {sT0}, {vB2}")
    a(f"v_bfe_u32 {vC}, {vLANE}, 2, 2")
    a(f"v_lshl_add_u32 {vOUT}, {vC}, 11, {vB2}")
    a(f"v_lshrrev_b32 {vC}, 2, {vLANE}")
    a(f"v_and_b32 {vX1}, 0x30, {vL16}")
    a(f"v_lshl_add_u32 {vX1}, {vC}, 7, {vX1}")
    a(f"s_lshl_b32 {sT0}, {sHKV}, 18")
    a(f"s_lshl_b32 {sT1}, {sB}, 13")
    a(f"s_add_u32 {sT0}, {sT0}, {sT1}")
    a(f"s_lshl_b32 {sT1}, {sS}, 9")
    a(f"s_add_u32 {sT0}, {sT0}, {sT1}")
    a(f"s_add_u32 {sOPO}, {sT0}, {OP}")
    a(f"s_lshl_b32 {sT0}, {sRG}, 15")
    a(f"s_lshl_b32 {sT1}, {sWAVE}, 13")
    a(f"s_add_u32 {sT0}, {sT0}, {sT1}")
    a(f"s_add_u32 {sOPG}, {sT0}, {OP}")
    a(f"s_lshl_b32 {sT2}, {sW4C}, 8")
    a(f"s_lshl_b32 {sT0}, {sWAVE}, 14")
    a(f"s_add_u32 {sT2}, {sT2}, {sT0}")
    a(f"s_lshl_b32 {sT0}, {sRG}, 7")
    a(f"s_add_u32 {sT2}, {sT2}, {sT0}")
    a(f"s_add_u32 {sT2}, {sT2}, {ZP}")
    a(f"s_lshl_b32 {sT0}, {sW4C}, 4")
    a(f"s_add_u32 {sT0}, {sT0}, {RG}")
    a(f"v_and_b32 {vC}, 31, {vLANE}")
    a(f"v_lshlrev_b32 {vC}, 7, {vC}")
    a(f"v_add_u32 {vCWA}, {sT0}, {vC}")
    a(f"v_and_b32 {vPR}, 15, {vLANE}")
    a(f"v_lshlrev_b32 {vPR}, 9, {vPR}")
    a(f"v_and_b32 {vC}, 31, {vLANE}")
    a(f"v_min_u32 {vC}, 27, {vC}")
    a(f"s_lshl_b32 {sT0}, {sRG}, 2")
    a(f"s_add_u32 {sT0}, {sT0}, {sWAVE}")
    a(f"s_mul_i32 {sT0}, {sT0}, 448")
    a(f"s_add_u32 {sT0}, {sT0}, {FH}")
    a(f"v_lshlrev_b32 {vC}, 4, {vC}")
    a(f"v_add_u32 {vFG}, {sT0}, {vC}")
    a.nofeed()
    stamp("sm")

    def factors():
        a(f"s_cmp_lg_u32 {sWAVE}, {7 if 'noml' in dbg else 0}")
        a(f"s_cbranch_scc1 L_nofac")
        sv = a.vm_done
        check_loop("ml", GM + [GMW], issue_ml, tok["ML"])
        m_, t_, l_ = vA, vB_, vC
        a(f"v_max3_f32 {m_}, v{GM[0]}, v{GM[1]}, v{GM[2]}")
        a(f"v_max3_f32 {t_}, v{GM[3]}, v{GM[4]}, v{GM[5]}")
        a(f"v_max3_f32 {m_}, {m_}, v{GM[6]}, v{GM[7]}")
        a(f"v_max_f32 {m_}, {m_}, {t_}")
        a(f"v_max_f32_dpp {m_}, {m_}, {m_} row_ror:8 row_mask:0xf bank_mask:0xf")
        rows_reduce("v_max_f32", [m_], [t_])
        for j in range(8):
            a(f"v_sub_f32 v{GM[j]}, v{GM[j]}, {m_}")
        a(f"v_sub_f32 {vMX}, v{GMW}, {m_}")
        for j in range(8):
            a(f"v_mul_f32 v{GM[j]}, {sLOG2E}, v{GM[j]}")
        a(f"v_mul_f32 {vMX}, {sLOG2E}, {vMX}")
        for j in range(8):
            a(f"v_exp_f32 v{GM[j]}, v{GM[j]}")
        a(f"v_exp_f32 {vMX}, {vMX}")
        a(f"v_mul_f32 {l_}, v{GM[0]}, v{GM[0]+2}")
        for j in range(1, 8):
            a(f"v_fmac_f32 {l_}, v{GM[j]}, v{GM[j]+2}")
        a(f"v_add_f32_dpp {l_}, {l_}, {l_} row_ror:8 row_mask:0xf bank_mask:0xf")
        rows_reduce("v_add_f32", [l_], [t_])
        a(f"v_rcp_f32 {t_}, {l_}")
        a(f"v_fma_f32 {m_}, -{l_}, {t_}, 1.0")
        a(f"v_fma_f32 {t_}, {m_}, {t_}, {t_}")
        a(f"v_mul_f32 {vMX}, {vMX}, {t_}")
        a(f"ds_write_b32 {vFW}, {vMX}")
        a.label("L_nofac")
        a.vm_done = sv
        a.wait_vm(tok["ML"] + 1)
        a(f"v_xor_b32 {vCW0}, {sLOC}, {vCW0}")
        a(f"v_xor_b32 {vCW1}, {vTAG}, {vCW1}")
        a(f"v_or_b32 {vCW0}, {vCW0}, {vCW1}")
        a(f"v_cmp_ne_u32 vcc, 0, {vCW0}")
        a(f"s_or_b32 {sLOC}, vcc_lo, vcc_hi")
        if "nofh" not in dbg:
            check_loop("fh", [GF], issue_fh, tok["FH"])
        a(f"v_and_b32 {vC}, 31, {vLANE}")
        a(f"v_cmp_gt_u32 vcc, 28, {vC}")
        a(f"s_lshl_b32 {sT0}, {sWAVE}, 6")
        a(f"s_add_u32 {sT0}, {sT0}, {L_HL}")
        a(f"v_lshl_add_u32 {vC}, {vC}, 1, {sT0}")
        a(f"v_cndmask_b32 v{GF}, 0, v{GF}, vcc")
        a(f"v_cndmask_b32 v{GF+2}, 0, v{GF+2}, vcc")
        a(f"ds_write_b16 {vC}, v{GF}")
        a(f"ds_write_b16_d16_hi {vC}, v{GF} offset:256")
        a(f"ds_write_b16 {vC}, v{GF+2} offset:512")
        a(f"ds_write_b16_d16_hi {vC}, v{GF+2} offset:768")
        if not zloc:
            a(f"s_mov_b32 {sLOC}, 1")

    def pv(t):
        if "nopv" in dbg:
            return
        base = V0 + 32 * (t % 4)
        for e in range(8):
            dd = e >> 1
            sel = sSELHI if e & 1 else sSELLO
            for u in range(4):
                a(f"v_perm_b32 v{D0 + 4*e + u}, v{base + 8*u + 4 + dd}, v{base + 8*u + dd}, {sel}")
            if e >= 1:
                ee = e - 1
                c = "0" if t == 0 else aq(4*ee)
                a(f"v_mfma_f32_16x16x32_bf16 {aq(4*ee)}, {vq(D0 + 4*ee)}, {vq(S0 + 8*t)}, {c}")
            if t == 7 and tailopt and e >= 3:
                a(f"ds_write_b128 {vRW}, {aq(4*(e-3))} offset:{L_RED + 16*(e-3)}")
        c = "0" if t == 0 else aq(28)
        a(f"v_mfma_f32_16x16x32_bf16 {aq(28)}, {vq(D0 + 28)}, {vq(S0 + 8*t)}, {c}")

    TB = ["v100", "v101", "v102", "v103"] if tailopt else ["v44", "v45", "v46", "v47"]
    sFF = sCG
    sZG = sKQ
    idx["WOa"] = idx["PRE"] + wo_early
    idx["WOb"] = max(idx["WOa"], idx["WOa"] + wo7)
    idx["W2a"] = min(idx["PRE"], idx["V7"] + w2a)
    nxt = [f"V{t + lag}" for t in range(8 - lag)] + ["V7"] * (lag - 3 if lag > 3 else 0)
    nxt += {3: ["W2a", "WOa", "WOb"], 2: ["WOa", "WOb"], 1: ["WOb"]}[lag]
    a.flush(idx[lexp])
    a.cap = capv or cap
    aft = ["V4", "V5", "V6", "V7"] + nxt[4:] if burst else nxt
    for t in range(8):
        if "novw" not in dbg:
            wait(f"V{t}")
        a.feed(idx[nxt[t]], P["pv"])
        pv(t)
        a.nofeed()
        a.flush(idx[aft[t]])
        if t == 6 and tailopt:
            tag_bytes(TB)
            a(f"s_movk_i32 {sFF}, 0xff")
            a(f"s_lshr_b32 {sT0}, {sRG}, 1")
            a(f"s_lshl_b32 {sT0}, {sT0}, 12")
            a(f"s_lshl_b32 {sT1}, {sW4C}, 8")
            a(f"s_add_u32 {sT0}, {sT0}, {sT1}")
            a(f"s_and_b32 {sT1}, {sRG}, 1")
            a(f"s_lshl_b32 {sT1}, {sT1}, 6")
            a(f"s_add_u32 {sT0}, {sT0}, {sT1}")
            a(f"s_add_u32 {sZG}, {sT0}, {ZP}")
        if t == 7 - lag:
            a.cap = capw
        if t == vbar:
            a("s_barrier")
        if t == facpos and "noqml" not in dbg:
            factors()
            stamp("fac")
    stamp("pv")
    if "allst" in dbg:
        a.flush(idx["WO"])
        a("s_waitcnt vmcnt(0)")
        a.vm_done = a.vm_issued
        a("s_barrier")
        stamp("wo")
        a(f"s_cmp_lg_u32 {sWAVE}, 0")
        a(f"s_cbranch_scc1 L_end")
        a(f"s_branch L_stamps")
    if tailopt:
        for e in range(5, 8):
            a(f"ds_write_b128 {vRW}, {aq(4*e)} offset:{L_RED + 16*e}")
    else:
        a(f"s_mov_b32 exec_lo, 0x00ff00ff")
        a(f"s_mov_b32 exec_hi, 0x00ff00ff")
        for e in range(8):
            a(f"ds_write_b128 {vRW}, {aq(4*e)} offset:{L_RED + 16*e}")
        a(f"s_mov_b64 exec, -1")
    a.flush(min(idx["WO"], a.fi + wpre))
    R = D0
    if not tailopt:
        tag_bytes(TB)
        a(f"s_movk_i32 {sFF}, 0xff")
    a(f"s_add_u32 {sT0}, {sOPG}, 4096")
    if w2b5:
        a.wait_vm(tok["W2"])
    a.lgkm(0)
    stamp("red_w")
    a("s_barrier")
    stamp("b5")
    a(f"ds_read_b128 {vq(R+16)}, {vMR}")
    for w in range(4):
        a(f"ds_read_b128 {vq(R + 4*w)}, {vRR} offset:{L_RED + w*RED_W}")
    a.flush(min(idx["WO"], a.fi + wmid))
    for w in range(4):
        a.lgkm(0 if stamps else 3 - w)
        for r in range(4):
            if w == 0:
                a(f"v_mul_f32 v{R+r}, v{R+16}, v{R+r}")
            else:
                a(f"v_fmac_f32 v{R+r}, v{R+16+w}, v{R+4*w+r}")
    for r in range(4):
        a(f"v_bfi_b32 v{48+r}, {sFF}, {TB[r]}, v{R+r}")
    a.grace_n = gracew

    def op_store():
        return a(f"buffer_store_dwordx4 {vq(48)}, {vOP}, {srd(rWS)}, {sOPO} offen sc1")

    if not stlate:
        tST = op_store()
        if "ack" in dbg:
            stamp("opub")
            a.wait_vm(tST)
            stamp("ack")
    if "ack" not in dbg:
        stamp("opub")
    GO = V0

    def issue_op(fl, js=range(8)):
        t = None
        for j in js:
            so = sOPG if j < 4 else sT0
            t = a(f"buffer_load_dwordx4 {vq(GO + 4*j)}, {vL16}, {srd(rWS)}, {so} offen offset:{1024*(j&3)}{fl}")
        return t

    GC = V0 + 96
    if opfirst:
        tOP = issue_op(fo)
    if opmid:
        a.flush(idx["W2"] + opmid - 1)
        tOP = issue_op(fo)
    if probe:
        a.wait_vm(tok["PR"])
        a(f"v_xor_b32 {vPRD}, {vPRD}, {TB[0]}")
        a(f"v_and_b32 {vPRD}, 0xff, {vPRD}")
        a(f"v_cmp_eq_u32 vcc, 0, {vPRD}")
        a(f"s_bcnt1_i32_b64 {sT1}, vcc")
        if stamps and "pcnt" in stamps:
            lo, hi = STAMPS[stamps.index("pcnt")]
            a(f"s_mov_b32 s{lo}, {sT1}")
            a(f"s_mov_b32 s{hi}, 0")
        a(f"s_cmp_ge_u32 {sT1}, {4 * probe}")
        a(f"s_cbranch_scc1 L_wfast")
        sv = (a.vm_issued, a.vm_done, a.fi)
        a.cap, a.grace = capslow, capslow - 1
        a.flush(idx["WO"])
        for j in range(8):
            a.room(1, capslow)
            issue_op(fo, [j])
        a(f"s_branch L_wdone")
        a.label("L_wfast")
        a.vm_issued, a.vm_done, a.fi = sv
        a.cap = 63
        a.flush(idx["WO"])
        tOP = issue_op(fo)
        a.label("L_wdone")
    a.flush(idx["WO"])
    stamp("wiss")
    if "wl" in dbg.split():
        a.wait_vm(tok["WO"])
        stamp("wl")
    if stlate == 1:
        op_store()
    if "exit" in dbg:
        a("s_waitcnt vmcnt(0)")
        a.vm_done = a.vm_issued
        stamp("wo")
        a(f"s_cmp_lg_u32 {sWAVE}, 0")
        a(f"s_cbranch_scc1 L_end")
        a(f"s_branch L_stamps")
    NOP = 4 if "halfop" in dbg else 1 if "oneop" in dbg else 8
    if "lateop" not in dbg and not opfirst and not opmid and not probe:
        tOP = issue_op(fo, range(NOP))
        if stlate == 2:
            op_store()
    AWO, AW2 = 64, 96
    Z = D0
    BH, BO = S0, S0 + 16
    stamp("giss")
    if not w2b5:
        a.wait_vm(tok["W2"])
        stamp("w2")
        a("s_barrier")
    stamp("w2b")
    for ks in range(4):
        a(f"ds_read_b128 {vq(BH + 4*ks)}, {vBO} offset:{L_HL - L_OL + 64*ks}")
    for (base, off) in ((AW2, 32768), (AWO, 0)):
        if base == AWO and opmid:
            break
        if base == AWO:
            if opfirst:
                check_loop("op1", [], issue_op, tOP, emb=TB, equads=[GO + 4*j for j in range(NOP)], clean=GC, once=True)
            a.wait_vm(tok["WO"])
            if "exit" not in dbg and "allst" not in dbg:
                stamp("wo")
            a("s_barrier")
        for ks in range(4):
            for c in range(2):
                for hh in range(2):
                    a(f"ds_read_b64_tr_b16 {aq(base + 16*c + 4*ks + 2*hh, 2)}, {vTR5 if c else vTR4} offset:{off + ks*8192 + hh*1024}")
            if ks == 1:
                a.lgkm(0)
        if base == AW2:
            a.lgkm(0)
            for ks in range(4):
                for c in range(2):
                    cc = "0" if ks == 0 else vq(Z + 4*c)
                    a(f"v_mfma_f32_16x16x32_bf16 {vq(Z + 4*c)}, {vq(BH + 4*ks)}, {aq(AW2 + 16*c + 4*ks)}, {cc}")
    if "lateop" in dbg:
        tOP = issue_op(fo, range(NOP))
    if "nochk" not in dbg:
      check_loop("op", [], issue_op, tOP, emb=TB, equads=[GO + 4*j for j in range(NOP)], clean=GC)
    GO = GC
    stamp("op_ok")
    O = V0 + 32
    if tailopt:
        for k in range(4):
            for r in (0, 2):
                a(f"v_pk_add_f32 {vq(O+4*k+r, 2)}, {vq(GO+8*k+r, 2)}, {vq(GO+8*k+4+r, 2)}")
        for k in (0, 8):
            for r in (0, 2):
                a(f"v_pk_add_f32 {vq(O+k+r, 2)}, {vq(O+k+r, 2)}, {vq(O+k+4+r, 2)}")
        for r in (0, 2):
            a(f"v_pk_add_f32 {vq(O+r, 2)}, {vq(O+r, 2)}, {vq(O+8+r, 2)}")
    else:
        for r in range(4):
            a(f"v_add_f32 v{O+r}, v{GO+r}, v{GO+4+r}")
            a(f"v_add_f32 v{O+4+r}, v{GO+8+r}, v{GO+12+r}")
            a(f"v_add_f32 v{O+8+r}, v{GO+16+r}, v{GO+20+r}")
            a(f"v_add_f32 v{O+12+r}, v{GO+24+r}, v{GO+28+r}")
        for r in range(4):
            a(f"v_add_f32 v{O+r}, v{O+r}, v{O+4+r}")
            a(f"v_add_f32 v{O+8+r}, v{O+8+r}, v{O+12+r}")
        for r in range(4):
            a(f"v_add_f32 v{O+r}, v{O+r}, v{O+8+r}")
    for r in range(4):
        a(f"v_mov_b32 v{O+4+r}, v{O+r}")
    for r in range(4):
        a(f"v_permlane32_swap_b32 v{O+r}, v{O+4+r}")
    for r in range(4):
        a(f"v_add_f32 v{O+r}, v{O+r}, v{O+4+r}")
    a(f"v_cvt_pk_bf16_f32 v{O}, v{O}, v{O+1}")
    a(f"v_cvt_pk_bf16_f32 v{O+2}, v{O+2}, v{O+3}")
    a(f"s_mov_b32 exec_hi, 0")
    a(f"ds_write_b16 {vOW}, v{O}")
    a(f"ds_write_b16_d16_hi {vOW}, v{O} offset:16")
    a(f"ds_write_b16 {vOW}, v{O+2} offset:32")
    a(f"ds_write_b16_d16_hi {vOW}, v{O+2} offset:48")
    a(f"s_mov_b64 exec, -1")
    a.lgkm(0)
    stamp("cmb")
    if opmid:
        a.wait_vm(tok["WO"])
        stamp("wo")
    a("s_barrier")
    stamp("b6")
    for ks in range(4):
        a(f"ds_read_b128 {vq(BO + 4*ks)}, {vBO} offset:{64*ks}")
        if opmid:
            for c in range(2):
                for hh in range(2):
                    a(f"ds_read_b64_tr_b16 {aq(AWO + 16*c + 4*ks + 2*hh, 2)}, {vTR5 if c else vTR4} offset:{ks*8192 + hh*1024}")
            if ks == 2:
                a.lgkm(0 if stamps else 10)
                for c in range(2):
                    a(f"v_mfma_f32_16x16x32_bf16 {vq(Z + 4*c)}, {vq(BO)}, {aq(AWO + 16*c)}, {vq(Z + 4*c)}")
    for ks in range(1 if opmid else 0, 4):
        a.lgkm(0 if stamps else (3 - ks) * (5 if opmid else 1))
        for c in range(2):
            a(f"v_mfma_f32_16x16x32_bf16 {vq(Z + 4*c)}, {vq(BO + 4*ks)}, {aq(AWO + 16*c + 4*ks)}, {vq(Z + 4*c)}")
    ZS = 48
    a(f"s_cmp_eq_u32 {sLOC}, 0")
    for r in range(4):
        a(f"v_mov_b32_dpp v{Z + r}, v{Z + 4 + r} quad_perm:[0,1,2,3] row_mask:0x2 bank_mask:0xf")
    for r in range(4):
        a(f"v_bfi_b32 v{ZS + r}, {sFF}, {TB[r]}, v{Z + r}")
    a(f"s_mov_b32 exec_hi, 0")
    a(f"s_cbranch_scc1 L_zplain")
    a(f"buffer_store_dwordx4 {vq(ZS)}, {vPUB}, {srd(rWS)}, {sT2} offen sc1")
    a(f"s_branch L_zdone")
    a.label("L_zplain")
    a.vm_issued -= 1
    a(f"buffer_store_dwordx4 {vq(ZS)}, {vPUB}, {srd(rWS)}, {sT2} offen")
    a.label("L_zdone")
    a(f"s_mov_b64 exec, -1")
    stamp("zpub")
    a(f"s_cmp_lg_u32 {sWAVE}, 0")
    a(f"s_cbranch_scc1 L_end")
    GZ = V0 + 64
    if not tailopt:
        a(f"s_lshr_b32 {sT0}, {sRG}, 1")
        a(f"s_lshl_b32 {sT0}, {sT0}, 12")
        a(f"s_lshl_b32 {sT1}, {sW4C}, 8")
        a(f"s_add_u32 {sT0}, {sT0}, {sT1}")
        a(f"s_and_b32 {sT1}, {sRG}, 1")
        a(f"s_lshl_b32 {sT1}, {sT1}, 6")
        a(f"s_add_u32 {sT0}, {sT0}, {sT1}")
        a(f"s_add_u32 {sZG}, {sT0}, {ZP}")

    def issue_z(fl, js=range(2)):
        t = None
        for j in js:
            t = a(f"buffer_load_dwordx4 {vq(GZ + 4*j)}, {vX1}, {srd(rWS)}, {sZG} offen offset:{2048*j}{fl}")
        return t

    tZ = issue_z(" sc1")
    x0, b0 = f"v{O}", f"v{O+1}"
    a(f"v_and_b32 {x0}, 0xffff0000, {vX}")
    a(f"v_and_b32 {b0}, 0xffff0000, {vB2}")
    a(f"v_add_f32 {x0}, {x0}, {b0}")
    check_loop("z", [], issue_z, tZ, emb=TB, equads=[GZ + 4*j for j in range(2)], clean=GZ + 8)
    GZ += 8
    stamp("z_ok")
    for r in range(4):
        a(f"v_add_f32 v{GZ+r}, v{GZ+r}, v{GZ+4+r}")
    for b in (4, 8):
        for r in range(4):
            a(f"v_add_f32_dpp v{GZ+r}, v{GZ+r}, v{GZ+r} row_ror:{b} row_mask:0xf bank_mask:0xf")
    for r in range(1, 4):
        a(f"v_mov_b32_dpp v{GZ}, v{GZ+r} quad_perm:[0,1,2,3] row_mask:0xf bank_mask:{hex(1 << r)}")
    rows_reduce("v_add_f32", [f"v{GZ}"], [f"v{GZ+1}"])
    a(f"v_add_f32 {x0}, {x0}, v{GZ}")
    a(f"v_cvt_pk_bf16_f32 {x0}, {x0}, {x0}")
    a(f"s_mov_b64 exec, 0xffff")
    a(f"global_store_short {vOUT}, {x0}, {sp(pOUT)}")
    if stamps:
        a.label("L_stamps")
        stamp("end")
        a.lgkm(0)
        a(f"s_mov_b64 exec, 1")
        a(f"s_mul_i32 {sT0}, s2, {8*len(STAMPS)}")
        a(f"s_add_u32 {sT0}, {sT0}, 0x8000000")
        a(f"v_mov_b32 {vA}, {sT0}")
        for i, (lo, hi) in enumerate(STAMPS):
            a(f"v_mov_b32 v{D0+2*i}, s{lo}")
            a(f"v_mov_b32 v{D0+2*i+1}, s{hi}")
        for i in range(len(STAMPS)):
            a(f"global_store_dwordx2 {vA}, {vq(D0+2*i, 2)}, {sp(pWS)} offset:{8*i}")
    a(f"s_cmp_lg_u32 s2, 0")
    a(f"s_cbranch_scc1 L_end")
    a(f"s_mov_b64 exec, 1")
    a(f"v_mov_b32 {vA}, 0")
    a(f"global_store_dword {vA}, {vTAG}, {sp(pWS)}")
    a.label("L_end")
    a("s_endpgm")
    assert a.fi == len(a.fq)
    a.raw('.section .rodata,"a"')
    a.raw(".p2align 6")
    a.raw(f".amdhsa_kernel {NAME}_kernel")
    a.raw("  .amdhsa_next_free_vgpr 512")
    a.raw("  .amdhsa_next_free_sgpr 102")
    a.raw("  .amdhsa_accum_offset 256")
    a.raw("  .amdhsa_group_segment_fixed_size 0")
    a.raw("  .amdhsa_kernarg_size 104")
    a.raw("  .amdhsa_user_sgpr_count 2")
    a.raw("  .amdhsa_user_sgpr_kernarg_segment_ptr 1")
    a.raw("  .amdhsa_system_sgpr_workgroup_id_x 1")
    a.raw("  .amdhsa_float_denorm_mode_32 3")
    a.raw(".end_amdhsa_kernel")
    return a.text()


if __name__ == "__main__":
    import argparse, json
    ap = argparse.ArgumentParser()
    ap.add_argument("-o", default="cdna_kernels/" + NAME + ".s")
    ap.add_argument("--stamps", default="")
    ap.add_argument("--kw", default="{}", help="json dict of gen() keyword arguments")
    x = ap.parse_args()
    kw = json.loads(x.kw)
    open(x.o, "w").write(gen(stamps=x.stamps.split(",") if x.stamps else None, **kw))
```

```python
import re

TRANS = ("v_exp_f32", "v_log_f32", "v_rcp_f32", "v_rsq_f32", "v_sqrt_f32", "v_sin_f32", "v_cos_f32")


def _regs(tok):
    tok = tok.strip()
    neg = tok.lstrip("-")
    if neg.startswith("abs(") and neg.endswith(")"):
        neg = neg[4:-1]
    neg = neg.strip("|")
    m = re.fullmatch(r"([vas])(\d+)", neg)
    if m:
        return {(m.group(1), int(m.group(2)))}
    m = re.fullmatch(r"([vas])\[(\d+):(\d+)\]", neg)
    if m:
        return {(m.group(1), i) for i in range(int(m.group(2)), int(m.group(3)) + 1)}
    if neg in ("vcc", "vcc_lo", "vcc_hi"):
        return {("s", "vcc")}
    if neg == "exec":
        return {("s", "exec")}
    if neg == "m0":
        return {("s", "m0")}
    return set()


class Ins:
    def __init__(self, text):
        self.text = text
        t = text.split(";")[0].strip()
        parts = t.split(None, 1)
        self.op = parts[0]
        rest = parts[1] if len(parts) > 1 else ""
        rest = re.sub(r"(quad_perm|op_sel|op_sel_hi|neg_lo|neg_hi):\[([^\]]*)\]", lambda m: m.group(1) + ":[" + m.group(2).replace(",", "_") + "]", rest)
        rest = re.sub(r"hwreg\(([^)]*)\)", lambda m: "hwreg(" + m.group(1).replace(",", "_").replace(" ", "") + ")", rest)
        ops = [x.strip() for x in rest.split(",")]
        mods = ""
        if ops and ops[-1]:
            sp = ops[-1].split(None, 1)
            ops[-1] = sp[0]
            mods = sp[1] if len(sp) > 1 else ""
        self.ops = ops
        self.mods = mods
        op = self.op
        R = [_regs(o) for o in ops]
        for o, r in zip(ops, R):
            assert r or not re.match(r"-?[vas]\[?\d", o), f"operand not parsed: {o} in {text}"
        self.w = set()
        self.r = set()
        self.kind = "other"
        self.states = 1
        U = lambda lst: set().union(*lst) if lst else set()
        if op == "s_nop":
            self.states = int(ops[0], 0) + 1
            self.kind = "salu"
        elif op.startswith("v_mfma"):
            self.kind = "mfma"
            self.w = R[0]
            self.a, self.b, self.c = R[1], R[2], R[3]
            self.r = R[1] | R[2] | R[3]
        elif op.startswith("v_cmp"):
            self.kind = "valu"
            self.w = R[0]
            self.r = U(R[1:])
        elif op.startswith("v_readfirstlane") or op.startswith("v_readlane"):
            self.kind = "valu"
            self.w = R[0]
            self.r = U(R[1:])
        elif op.startswith("v_permlane"):
            self.kind = "valu"
            self.w = R[0] | R[1]
            self.r = R[0] | R[1]
        elif op.startswith("v_"):
            self.kind = "valu"
            self.w = R[0]
            self.r = U(R[1:])
            if "_co_" in op:
                self.w |= R[1]
                self.r = U(R[2:])
            if op.startswith("v_fmac") or op.startswith("v_writelane") or "_dpp" in op and "bound_ctrl" not in mods and False:
                self.r |= R[0]
            if "_dpp" in op and ("row_mask:0xf" not in mods or "bank_mask:0xf" not in mods):
                self.keeps = R[0]
            if op.startswith("v_cndmask") and len(ops) == 3:
                self.r |= {("s", "vcc")}
        elif op.startswith("buffer_load") or op.startswith("global_load"):
            self.kind = "vmem"
            if re.search(r"\blds\b", mods) or "load_lds" in op:
                self.r = U(R) | {("s", "m0")}
                self.lds = True
            else:
                self.w = R[0]
                self.r = U(R[1:])
        elif op.startswith("buffer_store"):
            self.kind = "vmem"
            self.r = U(R)
            self.data = R[0]
        elif op.startswith("global_store"):
            self.kind = "vmem"
            self.r = U(R)
            self.data = R[1]
        elif op.startswith("buffer_atomic") or op.startswith("global_atomic"):
            self.kind = "vmem"
            self.r = U(R)
            if "sc0" in mods:
                self.w = R[0]
        elif op.startswith("ds_read") or op.startswith("ds_bpermute") or op.startswith("ds_swizzle"):
            self.kind = "ds"
            self.w = R[0]
            self.r = U(R[1:])
        elif op.startswith("ds_"):
            self.kind = "ds"
            self.r = U(R)
        elif op.startswith("s_"):
            self.kind = "salu"
            if not (op.startswith("s_cmp") or op.startswith("s_cbranch") or op in (
                    "s_waitcnt", "s_barrier", "s_branch", "s_endpgm", "s_sleep", "s_setprio", "s_bitcmp1_b32", "s_bitcmp0_b32")):
                self.w = R[0] if R else set()
                self.r = U(R[1:])
            else:
                self.r = U(R)
        self.trans = any(op.startswith(x) for x in TRANS)
        self.dpp = "_dpp" in op
        self.wide_store = hasattr(self, "data") and ("x3" in op or "x4" in op)


def need(prev, cur):
    n = 0
    vw = {x for x in prev.w if x[0] in "va"}
    sw = {x for x in prev.w if x[0] == "s"}
    if prev.kind == "valu":
        if cur.kind == "valu":
            if cur.dpp and (vw & (cur.r | getattr(cur, "keeps", set()))):
                n = max(n, 2)
            if cur.op.startswith("v_permlane") and (vw & cur.r):
                n = max(n, 2)
            if (cur.op.startswith("v_readfirstlane") or cur.op.startswith("v_readlane")) and (vw & cur.r):
                n = max(n, 1)
            if prev.trans and not cur.trans and (vw & cur.r):
                n = max(n, 1)
            if prev.trans and cur.trans and (vw & cur.r):
                n = max(n, 1)
            if sw & cur.r:
                n = max(n, 4 if cur.op.startswith("v_readlane") or cur.op.startswith("v_writelane") else 2)
            if ("sdwa" in prev.op or "op_sel" in prev.mods) and (vw & (cur.r | cur.w)):
                n = max(n, 1)
        if cur.kind == "mfma" and (vw & cur.r):
            n = max(n, 2)
        if cur.kind == "vmem" and (sw & cur.r):
            n = max(n, 5)
        if cur.kind == "salu" and (sw & cur.r):
            n = max(n, 1)
        if prev.trans and cur.kind in ("vmem", "ds") and (vw & cur.r):
            n = max(n, 1)
    if prev.kind == "mfma":
        passes = 8 if "32x32" in prev.op else 4
        big = {4: 8, 8: 12}[passes]
        if cur.kind == "mfma":
            if prev.w & (cur.a | cur.b):
                n = max(n, big)
            if (prev.w & cur.c) and prev.w != cur.c:
                n = max(n, {4: 6, 8: 10}[passes])
            if (prev.w & cur.w) and not (prev.w == cur.c):
                n = max(n, big)
        elif cur.kind in ("valu", "vmem", "ds"):
            if prev.w & (cur.r | cur.w):
                n = max(n, big)
            if cur.kind == "valu" and (prev.c & cur.w):
                n = max(n, {4: 3, 8: 7}[passes])
    if prev.wide_store:
        if prev.data & cur.w:
            n = max(n, 2)
    if prev.kind == "salu" and ("s", "m0") in prev.w and getattr(cur, "lds", False):
        n = max(n, 1)
    return n


class Asm:
    def __init__(self):
        self.lines = []
        self.hist = []
        self.vm_issued = 0
        self.vm_done = 0
        self.nops = 0
        self.fq = []
        self.fi = 0
        self.flimit = 0
        self.fperiod = 0
        self.fcount = 0
        self.infeed = False
        self.grace = 0
        self.grace_n = 0
        self.soft = None
        self.nsoft = 0
        self.cap = 63

    def raw(self, s):
        self.lines.append(s)

    def comment(self, s):
        self.lines.append("    ; " + s)

    def label(self, name, keep_hist=True):
        self.lines.append(name + ":")
        if not keep_hist:
            self.hist = []

    def __call__(self, text):
        ins = Ins(text)
        dist = 0
        pad = 0
        for p in reversed(self.hist):
            if dist >= 20:
                break
            pad = max(pad, need(p, ins) - dist)
            dist += p.states
        if pad > 0:
            self.nops += pad
            k = pad
            while k > 0:
                c = min(k, 16)
                nop = Ins(f"s_nop {c-1}")
                self.lines.append(f"    s_nop {c-1}")
                self.hist.append(nop)
                k -= c
        self.lines.append("    " + text)
        self.hist.append(ins)
        if len(self.hist) > 64:
            self.hist = self.hist[-40:]
        tok = None
        if ins.kind == "vmem":
            self.vm_issued += 1
            assert self.vm_issued - self.vm_done <= 63, f"vmcnt overflow at: {text}"
            tok = self.vm_issued - 1
            if "store" in ins.op:
                self.grace = self.grace_n
        if self.fperiod and not self.infeed:
            self.fcount += 1
            if self.fcount >= self.fperiod and self.fi < self.flimit:
                self.fcount = 0
                self.feed_one()
        return tok

    def feed_one(self):
        self.infeed = True
        if self.grace > 0:
            self.grace -= 1
            self.room(1)
        else:
            self.room(1, self.cap)
            if self.soft and self.vm_issued - self.vm_done + 1 > self.soft[1]:
                self.nsoft += 1
                self(f"s_cmp_lg_u32 {self.soft[0]}, 0")
                self(f"s_cbranch_scc1 L_soft{self.nsoft}")
                self(f"s_waitcnt vmcnt({self.soft[1] - 1})")
                self.label(f"L_soft{self.nsoft}")
        self.fq[self.fi]()
        self.fi += 1
        self.infeed = False

    def flush(self, upto):
        while self.fi < upto:
            self.feed_one()

    def feed(self, upto, period):
        self.flimit = upto
        self.fperiod = period
        self.fcount = period - 1 if period else 0

    def nofeed(self):
        self.fperiod = 0

    def wait_vm(self, tok):
        if tok < self.vm_done:
            return
        n = self.vm_issued - tok - 1
        self(f"s_waitcnt vmcnt({n})")
        self.vm_done = tok + 1

    def room(self, n, cap=63):
        out = self.vm_issued - self.vm_done
        if out + n > cap:
            k = cap - n
            self(f"s_waitcnt vmcnt({k})")
            self.vm_done = self.vm_issued - k

    def last(self):
        return self.vm_issued - 1

    def lgkm(self, n=0):
        self(f"s_waitcnt lgkmcnt({n})")

    def text(self):
        return "\n".join(self.lines) + "\n"
```

```python
import sys, struct
sys.path.insert(0, "dev")
from asmlib import Asm

NAME = "parallel_sum__gqa_block_cached__mixer_channel_mlp__decode"
HEADER = open("cdna_kernels/" + NAME + ".s.ref").read().split("; Override launch")[0]


def f32(x):
    return "0x%08x" % struct.unpack("<I", struct.pack("<f", x))[0]


QP, HP, FH, OP, ML, RG, ZP, WS_SIZE = 0x100000, 0x180000, 0x1c0000, 0x200000, 0x300000, 0x340000, 0x400000, 0x600000
L_WQ, L_W1, L_WO, L_W2 = 0, 32768, 65536, 98304
L_W1B = L_WO
L_RED = 0
L_XN, L_Y, L_Q, L_F, L_OL, L_HL = 131072, 139264, 147456, 149504, 149760, 150784
LDS_BYTES = 151808
RED_W, RED_H = 4224, 528

sWAVE = "s3"
pX, pK, pV, pWQ, pWO, pW1, pB1, pW2, pB2, pOUT, pWS = 16, 18, 20, 22, 24, 28, 30, 32, 34, 36, 40
sF0, sF1 = "s26", "s27"
sLAG = "s39"
sF2 = "s23"
sROT, sU, sQT, sKQ1 = "s38", "s86", "s88", "s43"
sCG1, sMLO, sLOC = "s0", "s1", "s80"
sOPO, sOPG = "s42", "s43"
rK, rV, rWQ, rW1, rWO, rW2, rWS = 44, 48, 52, 56, 60, 64, 68
sT0, sT1, sB, sHKV, sS, sKQ, sCG, sRG, sCG4 = ["s%d" % i for i in range(72, 81)]
sSELLO, sSELHI, sSCALE, sLOG2E, sT2 = "s81", "s82", "s83", "s84", "s85"
sMLG, sW4C = "s86", "s87"
sCNT, sT3 = "s88", "s89"
STAMPS = [(4, 5), (6, 7), (8, 9), (10, 11), (12, 13), (14, 15), (90, 91), (92, 93), (94, 95), (96, 97), (98, 99), (100, 101)]
vTID, vLANE, vK, vV, vL16, vTAG, vTR, vPUB, vB1, vW4, vSQ, vMX, vL = ["v%d" % i for i in range(13)]
vA, vB_, vC = "v13", "v14", "v15"
vX, vX1, vB2, vOUT, vTR5, vTR4, vBO, vMR = ["v%d" % i for i in range(16, 24)]
Q0 = 16
D0 = 24
T0 = 56
S0 = 64
V0 = 128


def srd(r):
    return f"s[{r}:{r+3}]"


def sp(r):
    return f"s[{r}:{r+1}]"


def vq(r, n=4):
    return f"v[{r}:{r+n-1}]"


def aq(r, n=4):
    return f"a[{r}:{r+n-1}]"


def gen(nt=" nt", wnt=" nt", stamps=None, limit=1 << 18, xaff=1, fq="", fo="", wsplit=1, dbg="", masked=2, slp=0, gpos=6,
        per=None, zloc=1, mlpos=5, facpos=4, wo_early=-3,  wo7=0, w2a=0, qemb=0, gafter=1, lqk='V0', lexp='V1', burst=0, opfirst=0, opmid=0, vbar=5, kvmap='g4', rotm=5, vrot=0, quota=(2, 1, 2, 1, 0, 0, 1, 1), stlate=0, wpre=0, wmid=0, w2b5=0, w2pos=8, tailopt=1, step=1, cap=6, cap0=63, capw=63, grace=8, lag=2, capq=12, capv=7, gracew=8, probe=0, capslow=3, ppos=7, kpre=1, w1first=0, theta=0, caphi=12, caplo=6, tlb=0, zp=0x400000, tsw=9, cap2=63, par=None, parmask=0xaa, w1gap=6, hpos=3, fhpos=7, w2gap=0, w2n=7, wqmix=0, nq0=2, w1off=0, kp0=0):
    ZP = zp
    a = Asm()
    if "nost" in dbg or "nobar" in dbg:
        class A2(Asm):
            def __call__(self, text):
                if "nost" in dbg and text.startswith("buffer_store"):
                    return self.vm_issued - 1
                if "nobar" in dbg and text.startswith("s_barrier"):
                    return None
                return Asm.__call__(self, text)
        a = A2()
    P = dict(ln=22, proj=10, qh=10, qk=40, exp=30, pv=5)
    P.update(per or {})

    def stamp(name):
        if stamps and name in stamps:
            lo, hi = STAMPS[stamps.index(name)]
            a(f"s_memrealtime s[{lo}:{hi}]")

    def rows_reduce(op, regs, tmps):
        for sw in ("v_permlane16_swap_b32", "v_permlane32_swap_b32"):
            for v, t in zip(regs, tmps):
                a(f"v_mov_b32 {t}, {v}")
            for v, t in zip(regs, tmps):
                a(f"{sw} {v}, {t}")
            for v, t in zip(regs, tmps):
                a(f"{op} {v}, {v}, {t}")

    def allreduce(op, v, t):
        for b in (8, 4, 2, 1):
            a(f"{op}_dpp {v}, {v}, {v} row_ror:{b} row_mask:0xf bank_mask:0xf")
        rows_reduce(op, [v], [t])

    def rne(dst, src):
        a(f"v_cvt_pk_bf16_f32 {dst}, {src}, {src}")
        a(f"v_lshlrev_b32 {dst}, 16, {dst}")

    def unpack(lo, hi, pk):
        a(f"v_lshlrev_b32 {lo}, 16, {pk}")
        a(f"v_and_b32 {hi}, 0xffff0000, {pk}")

    def check_loop(name, quads, issue, tok, emb=None, equads=(), clean=None, once=False):
        a(f"s_mov_b32 {sCNT}, 0")
        a.wait_vm(tok)
        stamp("first_" + name)
        a.label(f"L_chk_{name}")
        mn, mx = vA, vB_
        if equads:
            for qi, q in enumerate(equads):
                for k in range(4):
                    a(f"v_xor_b32 v{clean + 4*qi + k}, v{q+k}, {emb[k]}")
            regs = [f"v{clean + i}" for i in range(4 * len(equads))]
            acc = [mn, mx]
            a(f"v_or_b32 {mn}, {regs[0]}, {regs[1]}")
            a(f"v_or_b32 {mx}, {regs[2]}, {regs[3]}")
            for i in range(4, len(regs), 2):
                a(f"v_or3_b32 {acc[(i >> 1) & 1]}, {acc[(i >> 1) & 1]}, {regs[i]}, {regs[i+1]}")
            a(f"v_or_b32 {mn}, {mn}, {mx}")
            a(f"v_and_b32 {mn}, 0xff, {mn}")
        for qi, q in enumerate(quads):
            for k in (1, 3):
                if not equads and qi == 0 and k == 1:
                    a(f"v_xor_b32 {mn}, v{q+k}, {vTAG}")
                else:
                    a(f"v_bitop3_b32 {mn}, {mn}, v{q+k}, {vTAG} bitop3:0xf6")
        a(f"v_cmp_ne_u32 vcc, 0, {mn}")
        a(f"s_cbranch_vccz L_ok_{name}")
        if not once:
            a(f"s_add_u32 {sCNT}, {sCNT}, 1")
            a(f"s_cmp_gt_u32 {sCNT}, {limit}")
            a(f"s_cbranch_scc1 L_ok_{name}")
        sv = (a.vm_issued, a.vm_done)
        if a.vm_issued - a.vm_done > 40:
            a.vm_done = a.vm_issued - 40
            a("s_waitcnt vmcnt(40)")
        if equads and not quads:
            for qi, q in enumerate(equads):
                c = clean + 4 * qi
                a(f"v_or3_b32 {mn}, v{c}, v{c+1}, v{c+2}")
                a(f"v_or_b32 {mn}, {mn}, v{c+3}")
                a(f"v_or_b32_dpp {mn}, {mn}, {mn} quad_perm:[1,0,3,2] row_mask:0xf bank_mask:0xf")
                a(f"v_or_b32_dpp {mn}, {mn}, {mn} quad_perm:[2,3,0,1] row_mask:0xf bank_mask:0xf")
                a(f"v_and_b32 {mn}, 0xff, {mn}")
                a(f"v_cmp_ne_u32 vcc, 0, {mn}")
                a(f"s_cbranch_vccz L_skip_{name}{qi}")
                a("s_mov_b64 exec, vcc")
                issue(" sc1", [qi])
                a("s_mov_b64 exec, -1")
                a.label(f"L_skip_{name}{qi}")
        else:
            if equads:
                a(f"v_or_b32_dpp {mn}, {mn}, {mn} quad_perm:[1,0,3,2] row_mask:0xf bank_mask:0xf")
                a(f"v_or_b32_dpp {mn}, {mn}, {mn} quad_perm:[2,3,0,1] row_mask:0xf bank_mask:0xf")
                a(f"v_cmp_ne_u32 vcc, 0, {mn}")
            a("s_mov_b64 exec, vcc")
            issue(" sc1")
            a("s_mov_b64 exec, -1")
        if slp and name == "op":
            a(f"s_sleep {slp}")
        if once:
            a.label(f"L_ok_{name}")
            a("s_waitcnt vmcnt(0)")
            a.vm_issued = sv[0]
            a.vm_done = sv[0]
            return
        a("s_waitcnt vmcnt(0)")
        a.vm_issued, a.vm_done = sv
        a(f"s_branch L_chk_{name}")
        a.label(f"L_ok_{name}")
        if stamps and ("cnt_" + name) in stamps:
            lo, hi = STAMPS[stamps.index("cnt_" + name)]
            a(f"s_mov_b32 s{lo}, {sCNT}")
            a(f"s_mov_b32 s{hi}, 0")

    class wave0:
        def __init__(self, name):
            self.name = name

        def __enter__(self):
            self.per = a.fperiod
            a.fperiod = 0
            self.sv = (a.vm_issued, a.vm_done)
            a(f"s_cmp_lg_u32 {sWAVE}, 0")
            a(f"s_cbranch_scc1 L_w0_{self.name}")

        def __exit__(self, *e):
            a.label(f"L_w0_{self.name}")
            a.vm_issued, a.vm_done = self.sv
            a.fperiod = self.per

    def tag_bytes(regs):
        for k in range(4):
            a(f"v_bfe_u32 {regs[k]}, {vTAG}, {8*k}, 8")

    a.raw(HEADER.rstrip())
    a.raw(f"; @launch grid=(256,1,1) block=(256,1,1) lds={LDS_BYTES}")
    a.raw('.amdgcn_target "amdgcn-amd-amdhsa--gfx950"')
    a.raw(".text")
    a.raw(f".globl {NAME}_kernel")
    a.raw(".p2align 8")
    a.raw(f".type {NAME}_kernel,@function")
    a.raw(f"{NAME}_kernel:")
    a("s_cmp_ge_u32 s2, 256")
    a("s_cbranch_scc1 L_end")
    a("s_load_dwordx16 s[16:31], s[0:1], 0")
    a("s_load_dwordx8 s[32:39], s[0:1], 64")
    a("s_load_dwordx2 s[40:41], s[0:1], 96")
    stamp("start")
    vW = "v56"; vW1 = "v57"; vPF = "v58"; vZ = "v59"
    a(f"s_getpc_b64 s[42:43]")
    a.label("L_pc")
    a(f"v_lshlrev_b32 {vPF}, 7, {vTID}")
    a(f"v_min_u32 {vPF}, L_end-L_pc, {vPF}")
    if "nopf" not in dbg:
        a(f"global_load_dword {vPF}, {vPF}, s[42:43]")
    a(f"v_lshrrev_b32 {vA}, 6, {vTID}")
    a(f"v_and_b32 {vLANE}, 63, {vTID}")
    a(f"v_readfirstlane_b32 {sWAVE}, {vA}")
    a(f"v_lshlrev_b32 {vL16}, 4, {vLANE}")
    a(f"v_lshl_add_u32 {vV}, {vA}, 11, {vL16}")
    a(f"s_bfe_u32 {sKQ}, s2, 0x20001")
    a(f"s_and_b32 {sCG}, s2, 1")
    a(f"s_lshl_b32 {sCG}, {sCG}, 5")
    a(f"s_lshr_b32 {sT0}, s2, 3")
    a(f"s_add_u32 {sCG}, {sCG}, {sT0}")
    a(f"v_lshrrev_b32 {vB_}, 3, {vTID}")
    a(f"v_and_b32 {vC}, 7, {vB_}")
    a(f"v_lshl_add_u32 {vB_}, {vA}, 6, {vC}")
    a(f"s_lshl_b32 {sT0}, {sKQ}, 8")
    a(f"v_add_u32 {vB_}, {sT0}, {vB_}")
    a(f"v_and_b32 {vC}, 0x70, {vL16}")
    a(f"v_lshl_add_u32 {vW}, {vB_}, 13, {vC}")
    if wsplit == 3:
        units, nxt_u = {}, 0
        for x in sorted(range(8), key=lambda x: -quota[x]):
            units[x] = nxt_u if quota[x] else 0
            nxt_u += quota[x]
        assert nxt_u == 8
        UT = sum(units[x] << (4 * x) for x in range(8))
        QT = sum(quota[x] << (4 * x) for x in range(8))
        a(f"s_and_b32 {sT1}, s2, 7")
        a(f"s_lshl_b32 {sT1}, {sT1}, 2")
        a(f"s_lshr_b32 {sU}, {hex(UT)}, {sT1}")
        a(f"s_lshr_b32 {sQT}, {hex(QT)}, {sT1}")
        a(f"s_bfe_u32 {sKQ1}, {sU}, 0x20001")
        a(f"s_sub_u32 {sT1}, {sKQ1}, {sKQ}")
        a(f"s_lshl_b32 {sT1}, {sT1}, 8")
        a(f"v_add_u32 {vB_}, {sT1}, {vB_}")
    a(f"v_mul_u32_u24 {vW1}, 7168, {vB_}")
    a(f"v_add_u32 {vW1}, {vW1}, {vC}")
    a(f"v_mov_b32 {vZ}, 0")
    a(f"s_lshl_b32 {sT2}, {sCG}, 7")
    a(f"s_lshl_b32 {sT3}, {sWAVE}, 13")
    a(f"s_mov_b32 s{rWQ+2}, 0x800000")
    a(f"s_mov_b32 s{rWQ+3}, 0x20000")
    a(f"s_mov_b32 s{rW1+3}, 0x20000")
    stamp("pre")
    a.lgkm(0)
    stamp("args")
    X = S0
    a(f"global_load_dwordx4 {vq(X)}, {vV}, {sp(pX)}")
    tX = a(f"global_load_dwordx4 {vq(X+4)}, {vV}, {sp(pX)} offset:1024")
    a(f"s_mov_b64 s[{rWQ}:{rWQ+1}], {sp(pWQ)}")
    a(f"s_mov_b64 s[{rW1}:{rW1+1}], {sp(pW1)}")
    def wq_load(j):
        def f():
            a(f"s_add_u32 m0, {sT3}, {L_WQ + j*1024}")
            a(f"s_add_u32 {sF1}, {sT2}, {j*8*8192}")
            tk["WQ"] = a(f"buffer_load_dwordx4 {vW}, {srd(rWQ)}, {sF1} offen{wnt} lds")
        return f
    tk = {}
    for j in range(nq0 if wqmix else 8):
        wq_load(j)()
    stamp("wq_iss")
    if wsplit == 3:
        a(f"s_lshr_b32 {sT1}, s2, 3")
        a(f"s_lshr_b32 {sT0}, s2, 6")
        a(f"s_sub_u32 {sCG1}, {sT1}, {sT0}")
        a(f"s_and_b32 {sT0}, {sT1}, 7")
        a(f"s_cmp_gt_u32 {sT0}, 3")
        a(f"s_subb_u32 {sCG1}, {sCG1}, 0")
        a(f"s_lshl_b32 {sCG1}, {sCG1}, 1")
        a(f"s_and_b32 {sT1}, {sU}, 1")
        a(f"s_add_u32 {sCG1}, {sCG1}, {sT1}")
        a(f"s_and_b32 {sQT}, {sQT}, 3")
        a(f"s_cmp_eq_u32 {sT0}, 3")
        a(f"s_cselect_b32 {sQT}, 0, {sQT}")
        a(f"s_cmp_gt_u32 {sQT}, 0")
        a(f"s_cselect_b32 s{rW1+2}, 0x700000, 0")
        a(f"s_cselect_b32 {sCG1}, {sCG1}, 60")
    elif wsplit == 0:
        a(f"s_mov_b32 {sCG1}, {sCG}")
        a(f"s_cmp_lt_u32 {sCG}, 56")
        a(f"s_cselect_b32 s{rW1+2}, 0x700000, 0")
    else:
        a(f"s_lshr_b32 {sT0}, {sCG}, 3")
        a(f"s_sub_u32 {sCG1}, {sCG}, {sT0}")
        a(f"s_and_b32 {sT0}, {sCG}, 7")
        a(f"s_cmp_gt_u32 {sT0}, 3")
        a(f"s_subb_u32 {sCG1}, {sCG1}, 0")
        if wsplit == 2:
            a(f"s_lshl_b32 {sCG1}, {sCG1}, 1")
            a(f"s_and_b32 {sT1}, s2, 1")
            a(f"s_cselect_b32 {sT0}, 3, {sT0}")
        a(f"s_cmp_lg_u32 {sT0}, 3")
        a(f"s_cselect_b32 s{rW1+2}, 0x700000, 0")
        a(f"s_cselect_b32 {sCG1}, {sCG1}, 60")
    a(f"s_lshl_b32 {sMLO}, {sCG1}, 7")
    tE = a(f"global_load_dword {vTAG}, {vZ}, {sp(pWS)}")
    stamp("w_iss")
    a(f"v_bfe_u32 {vB_}, {vLANE}, 2, 2")
    a(f"v_bfe_u32 {vC}, {vLANE}, 1, 1")
    a(f"v_lshl_add_u32 {vB_}, {vC}, 2, {vB_}")
    a(f"v_lshlrev_b32 {vK}, 8, {vB_}")
    WSH = {"t2": 11, "t4": 12, "t8": 13, "g4": 12, "g2": 11, "gh": 16, "gm": 15, "gn": 14, "gu": 11, "gv": 11, "g8": 13}[kvmap]
    a(f"v_lshl_add_u32 {vK}, {vA}, {WSH}, {vK}")
    a(f"v_lshrrev_b32 {vB_}, 4, {vLANE}")
    a(f"v_lshl_add_u32 {vK}, {vB_}, 5, {vK}")
    a(f"v_and_b32 {vC}, 1, {vLANE}")
    a(f"v_lshl_add_u32 {vK}, {vC}, 4, {vK}")
    if xaff:
        a(f"s_and_b32 {sT0}, s2, 7")
        a(f"s_lshl_b32 {sT0}, {sT0}, 1")
        a(f"s_bfe_u32 {sT1}, s2, 0x10003")
        a(f"s_add_u32 {sT0}, {sT0}, {sT1}")
        a(f"s_lshr_b32 {sB}, {sT0}, 2")
        a(f"s_and_b32 {sHKV}, {sT0}, 3")
        a(f"s_lshr_b32 {sS}, s2, 4")
        if kvmap[0] == "g":
            a(f"s_mul_i32 {sROT}, {sT0}, {rotm}")
            a(f"s_lshl_b32 {sT0}, {sT0}, 22")
            if kvmap in ("gh", "gm", "gn"):
                nb = WSH - 12
                a(f"s_and_b32 {sT1}, {sS}, {(1 << nb) - 1}")
                a(f"s_lshl_b32 {sT1}, {sT1}, 12")
                a(f"s_lshr_b32 {sF0}, {sS}, {nb}")
                a(f"s_lshl_b32 {sF0}, {sF0}, {WSH + 2}")
                a(f"s_add_u32 {sT1}, {sT1}, {sF0}")
            else:
                a(f"s_lshl_b32 {sT1}, {sS}, {WSH + 2}")
            a(f"s_add_u32 {sT0}, {sT0}, {sT1}")
        else:
            a(f"s_lshl_b32 {sT0}, {sT0}, 4")
            a(f"s_add_u32 {sT0}, {sT0}, {sS}")
            a(f"s_lshl_b32 {sT0}, {sT0}, 18")
    else:
        a(f"s_lshr_b32 {sB}, s2, 6")
        a(f"s_bfe_u32 {sHKV}, s2, 0x20004")
        a(f"s_and_b32 {sS}, s2, 15")
        a(f"s_lshl_b32 {sT0}, s2, 18")
    a(f"s_add_u32 s{rK}, s{pK}, {sT0}")
    a(f"s_addc_u32 s{rK+1}, s{pK+1}, 0")
    a(f"s_add_u32 s{rV}, s{pV}, {sT0}")
    a(f"s_addc_u32 s{rV+1}, s{pV+1}, 0")
    a(f"s_lshr_b32 {sRG}, s2, 3")
    a(f"s_getreg_b32 {sLOC}, hwreg(HW_REG_XCC_ID, 0, 4)")
    if par:
        a(f"s_lshr_b32 {sLAG}, {parmask}, {sLOC}")
        a(f"s_and_b32 {sLAG}, {sLAG}, 1")
    for r in (rK, rV, rWO, rW2, rWS):
        a(f"s_mov_b32 s{r+3}, 0x20000")
    if kvmap[0] == "g":
        a(f"s_sub_u32 s{rK+2}, 0x400000, {sT1}")
        a(f"s_mov_b32 s{rV+2}, s{rK+2}")
    else:
        a(f"s_mov_b32 s{rK+2}, 0x40000")
        a(f"s_mov_b32 s{rV+2}, 0x40000")
    a(f"s_mov_b32 s{rWO+2}, 0x800000")
    a(f"s_mov_b32 s{rW2+2}, 0x700000")
    a(f"s_mov_b32 s{rWS+2}, {WS_SIZE}")
    for (r, p) in ((rWO, pWO), (rW2, pW2), (rWS, pWS)):
        a(f"s_mov_b64 s[{r}:{r+1}], {sp(p)}")

    vVV = vV
    late = {}
    tok = {}
    idx = {}

    def q_tile(kind, t):
        for u in range(4):
            for j in range(2):
                def f(u=u, j=j):
                    im = 0
                    if kvmap == "t2":
                        if j == 0:
                            a(f"s_mov_b32 {sF0}, {t*32768 + u*8192}")
                    elif kvmap == "t4":
                        im = (u & 1) * 2048
                        if j == 0 and not u & 1:
                            a(f"s_mov_b32 {sF0}, {t*32768 + (u >> 1)*16384}")
                    elif kvmap == "t8":
                        im = (u & 1) * 2048
                        if j == 0 and not u & 1:
                            a(f"s_mov_b32 {sF0}, {t*32768 + (u >> 1)*4096}")
                    elif kvmap == "g8":
                        im = (u & 1) * 2048
                        if j == 0 and not u & 1:
                            a(f"s_add_u32 {sF0}, {sROT}, {t}")
                            a(f"s_and_b32 {sF0}, {sF0}, 7")
                            a(f"s_lshl_b32 {sF0}, {sF0}, 19")
                            a(f"s_add_u32 {sF0}, {sF0}, {(u >> 1) * 4096}")
                    elif kvmap in ("gu", "gv"):
                        if j == 0:
                            if kvmap == "gu":
                                a(f"s_add_u32 {sF0}, {sROT}, {t}")
                                a(f"s_and_b32 {sF0}, {sF0}, 7")
                                a(f"s_lshl_b32 {sF0}, {sF0}, 19")
                                a(f"s_add_u32 {sF0}, {sF0}, {u << 17}")
                            else:
                                a(f"s_add_u32 {sF0}, {sROT}, {2*t + (u >> 1)}")
                                a(f"s_and_b32 {sF0}, {sF0}, 15")
                                a(f"s_lshl_b32 {sF0}, {sF0}, 18")
                                a(f"s_add_u32 {sF0}, {sF0}, {(u & 1) << 17}")
                    elif kvmap in ("g4", "gh", "gm", "gn"):
                        im = (u & 1) * 2048
                        if j == 0 and not u & 1:
                            a(f"s_add_u32 {sF0}, {sROT}, {(step * (2*t + (u >> 1))) & 15}")
                            a(f"s_and_b32 {sF0}, {sF0}, 15")
                            a(f"s_lshl_b32 {sF0}, {sF0}, 18")
                    elif kvmap == "g2":
                        if j == 0:
                            a(f"s_add_u32 {sF0}, {sROT}, {4*t + u}")
                            a(f"s_and_b32 {sF0}, {sF0}, 31")
                            a(f"s_lshl_b32 {sF0}, {sF0}, 17")
                    if kind == "K":
                        tok[f"K{t}"] = a(f"buffer_load_dwordx4 {aq(32*t + 8*u + 4*j)}, {vK}, {srd(rK)}, {sF0} offen offset:{im + j*128}{nt}")
                    else:
                        tok[f"V{t}"] = a(f"buffer_load_dwordx4 {vq(V0 + 32*(t % 4) + 8*u + 4*j)}, {vVV}, {srd(rV)}, {sF0} offen offset:{im + j*1024}{nt}")
                a.fq.append(f)
        idx[f"{kind}{t}"] = len(a.fq)

    def q_w(name, r, lb, rows):
        for j in range(rows // 4):
            def f(j=j):
                if j == 0 or (name == "W2" and w2gap):
                    a(f"s_lshl_b32 {sF1}, {sRG}, 2")
                    a(f"s_add_u32 {sF1}, {sF1}, {sWAVE}")
                    a(f"s_mul_i32 {sF1}, {sF1}, {rows*2048}")
                    if "rotw" in dbg:
                        a(f"s_lshl_b32 {sF0}, {sRG}, 8")
                        a(f"s_add_u32 {sF0}, {sF0}, {sW4C}")
                        a(f"s_and_b32 {sF0}, {sF0}, 0x7ff")
                        a(f"s_add_u32 {sF1}, {sF1}, {sF0}")
                    else:
                        a(f"s_add_u32 {sF1}, {sF1}, {sW4C}")
                a(f"s_add_u32 m0, {sT3}, {lb + j*1024}")
                a(f"s_add_u32 {sF2}, {sF1}, {j*8192}")
                tok[name] = a(f"buffer_load_dwordx4 {vW4b if j & 2 else vW4}, {srd(r)}, {sF2} offen{wnt} lds")
            a.fq.append(f)
        idx[name] = len(a.fq)

    GM = [S0 + 8*t + 4 for t in range(8)]
    vW4b, vCW0, vCW1, vCWA = vB1, "v60", "v61", "v62"
    vPR, vPRD = vTR, vMX

    def issue_ml(fl, js=range(2)):
        t = None
        for j in js:
            t = a(f"buffer_load_dwordx4 {vq(GM[j])}, {vL16}, {srd(rWS)}, {sMLG} offen offset:{1024*j}{fl}")
        return t

    def q_ml():
        for j in range(2):
            def f(j=j):
                tok["ML"] = issue_ml(" sc1", [j])
            a.fq.append(f)
        a.fq.append(lambda: a(f"buffer_load_dwordx2 v[60:61], {vCWA}, {srd(rWS)}, 0 offen sc1"))
        if tlb:
            def touch(r, rows):
                def f():
                    a(f"s_lshl_b32 {sF1}, {sRG}, 2")
                    a(f"s_add_u32 {sF1}, {sF1}, {sWAVE}")
                    a(f"s_mul_i32 {sF1}, {sF1}, {rows*2048}")
                    a(f"s_add_u32 {sF1}, {sF1}, {sW4C}")
                    a(f"buffer_load_dword v{S0+16}, off, {srd(r)}, {sF1} nt")
                return f
            a.fq.append(touch(rW2, 28))
            a.fq.append(touch(rWO, 32))
            a.fq.append(lambda: a(f"buffer_load_dword v{S0+16}, off, {srd(rWS)}, {sT2}"))
            a.fq.append(lambda: a(f"global_load_ushort v{S0+16}, {vOUT}, {sp(pOUT)}"))
        idx["ML"] = len(a.fq)

    GF, vFG = S0 + 8, vK

    def issue_fh(fl):
        return a(f"buffer_load_dwordx4 {vq(GF)}, {vFG}, {srd(rWS)}, 0 offen{fl}")

    for t in range(8):
        q_tile("K", t)
    def w1_load(j):
        def f():
            a(f"s_add_u32 m0, {sT3}, {L_W1 + j*1024}")
            a(f"s_add_u32 {sF1}, {sMLO}, {j*8*7168}")
            tok["W1"] = a(f"buffer_load_dwordx4 {vW1}, {srd(rW1)}, {sF1} offen{wnt} lds")
        return f
    nmix = 0
    if wqmix:
        for j in range(nq0, 8):
            pos = (j - nq0 + 1) * wqmix + (j - nq0)
            a.fq.insert(pos, wq_load(j))
            nmix = pos + 1
            for k in idx:
                if idx[k] > pos:
                    idx[k] += 1
    for j in range(8):
        pos = nmix + w1off + (j + 1) * w1gap + j
        a.fq.insert(pos, w1_load(j))
        for k in idx:
            if idx[k] > pos:
                idx[k] += 1
    for t in range(8):
        if t == mlpos and "noqml" not in dbg:
            q_ml()
        if t == ppos and probe:
            a.fq.append(lambda: tok.__setitem__("PR", a(f"buffer_load_dword {vPRD}, {vPR}, {srd(rWS)}, {sOPG} offen sc1")))
        if t == hpos:
            def hl():
                with wave0("hl"):
                    a(f"global_load_short_d16_hi {late['vB1h']}, {late['vB1h']}, {sp(pB1)}")
                    late["issue_h"](" sc1")
                tok["Hm"] = a.vm_issued
            a.fq.append(hl)
        if t == fhpos:
            a.fq.append(lambda: tok.__setitem__("FH", issue_fh(" sc1")))
        if t == w2pos:
            q_w("W2", rW2, L_W2, 28)
        q_tile("V", t)
    def xb2():
        with wave0("xb2"):
            a(f"global_load_short_d16_hi {vX}, {vOUT}, {sp(pX)}")
            a(f"global_load_short_d16_hi {vB2}, {vB2}, {sp(pB2)}")
    a.fq.append(xb2)
    if w2pos == 8:
        q_w("W2", rW2, L_W2, 28)
    idx["PRE"] = len(a.fq)
    if w2gap:
        first = idx["PRE"] - 7
        for j in range(w2n):
            f = a.fq.pop(first + j)
            pos = idx["V1"] + (j + 1) * w2gap
            a.fq.insert(pos, f)
            for k in idx:
                if pos < idx[k] <= first + j:
                    idx[k] += 1
    q_w("WO", rWO, L_WO, 32)

    def wait(name):
        a.flush(idx[name])
        a.wait_vm(tok[name])

    a.flush(max(nmix, kp0))
    a(f"s_mov_b32 {sSELLO}, 0x05040100")
    a(f"s_mov_b32 {sSELHI}, 0x07060302")
    a(f"s_mov_b32 {sSCALE}, {f32(128 ** -0.5)}")
    a(f"s_mov_b32 {sLOG2E}, {f32(1.4426950408889634)}")
    a(f"v_lshrrev_b32 {vA}, 4, {vLANE}")
    a(f"v_lshlrev_b32 {vSQ}, 4, {vA}")
    a(f"v_bfe_u32 {vB_}, {vLANE}, 2, 2")
    a(f"v_lshl_add_u32 {vB_}, {vA}, 3, {vB_}")
    a(f"v_and_b32 {vC}, 3, {vLANE}")
    a(f"v_lshlrev_b32 {vC}, 3, {vC}")
    a(f"v_lshl_add_u32 {vTR}, {vB_}, 7, {vC}")
    a(f"v_and_b32 {vB_}, 15, {vLANE}")
    if qemb:
        a(f"v_lshl_add_u32 {vPUB}, {vB_}, 16, {vSQ}")
    else:
        a(f"v_lshlrev_b32 {vB_}, 3, {vB_}")
        a(f"v_lshl_add_u32 {vPUB}, {vA}, 17, {vB_}")
    a(f"v_and_b32 {vB_}, 0xf0, {vL16}")
    a(f"v_lshlrev_b32 {vC}, 5, {vA}")
    a(f"v_xor_b32 {vB_}, {vB_}, {vC}")
    a(f"v_lshl_add_u32 {vW4}, {vA}, 11, {vB_}")
    a(f"s_and_b32 {sW4C}, s2, 7")
    a(f"s_lshl_b32 {sW4C}, {sW4C}, 8")
    for i in range(4):
        a(f"v_mov_b32 v{D0+i}, 0")
    a(f"v_add_u32 {vA}, {sT3}, {vL16}")
    a(f"v_add_u32 {vA}, {L_W2 + 7168}, {vA}")
    a(f"ds_write_b128 {vA}, {vq(D0)}")

    XF = S0 + 16
    DV = S0 + 32
    a.wait_vm(tX)
    stamp("x")

    def layernorm(ldsoff):
        if "noln" in dbg:
            return
        s_, m_, r_, t_ = "v112", "v113", "v114", "v115"
        for i in range(8):
            unpack(f"v{XF+2*i}", f"v{XF+2*i+1}", f"v{X+i}")
        for i in range(8):
            a(f"v_add_f32 v{DV+i}, v{XF+2*i}, v{XF+2*i+1}")
        for i in range(4):
            a(f"v_add_f32 v{DV+i}, v{DV+i}, v{DV+4+i}")
        a(f"v_add_f32 v{DV}, v{DV}, v{DV+2}")
        a(f"v_add_f32 v{DV+1}, v{DV+1}, v{DV+3}")
        a(f"v_add_f32 {m_}, v{DV}, v{DV+1}")
        allreduce("v_add_f32", m_, t_)
        a(f"v_mul_f32 {m_}, {f32(1.0/1024)}, {m_}")
        for i in range(16):
            a(f"v_sub_f32 v{DV+i}, v{XF+i}, {m_}")
        a(f"v_mul_f32 {s_}, v{DV}, v{DV}")
        a(f"v_mul_f32 {r_}, v{DV+1}, v{DV+1}")
        for i in range(2, 16, 2):
            a(f"v_fmac_f32 {s_}, v{DV+i}, v{DV+i}")
            a(f"v_fmac_f32 {r_}, v{DV+i+1}, v{DV+i+1}")
        a(f"v_add_f32 {s_}, {s_}, {r_}")
        allreduce("v_add_f32", s_, t_)
        a(f"v_mul_f32 {s_}, {f32(1.0/1024)}, {s_}")
        rne(m_, m_)
        rne(s_, s_)
        a(f"v_add_f32 {s_}, {f32(1e-5)}, {s_}")
        rne(s_, s_)
        a(f"v_sqrt_f32 {s_}, {s_}")
        rne(s_, s_)
        a(f"v_rcp_f32 {r_}, {s_}")
        for i in range(16):
            a(f"v_sub_f32 v{DV+i}, v{XF+i}, {m_}")
        a.lgkm(0)
        for i in range(8):
            a(f"v_cvt_pk_bf16_f32 v{X+i}, v{DV+2*i}, v{DV+2*i+1}")
        for i in range(8):
            unpack(f"v{DV+2*i}", f"v{DV+2*i+1}", f"v{X+i}")
        for i in range(16):
            a(f"v_mul_f32 v{XF+i}, v{DV+i}, {r_}")
        for i in range(16):
            a(f"v_fma_f32 v{DV+i}, -v{XF+i}, {s_}, v{DV+i}")
        for i in range(16):
            a(f"v_fma_f32 v{XF+i}, v{DV+i}, {r_}, v{XF+i}")
        for i in range(8):
            a(f"v_cvt_pk_bf16_f32 v{X+i}, v{XF+2*i}, v{XF+2*i+1}")
        a(f"v_add_u32 {t_}, {ldsoff}, {vV}")
        a(f"ds_write_b128 {t_}, {vq(X)}")
        a(f"ds_write_b128 {t_}, {vq(X+4)} offset:1024")

    a.cap = cap0
    a.grace_n = grace
    a.feed(idx["K0"], P["ln"])
    layernorm(L_XN)
    a.flush(idx["K0"])
    a.feed(idx["K1"], P["ln"])
    layernorm(L_Y)
    a.nofeed()
    a.flush(idx[f"K{kpre}"])
    stamp("ln")
    if WSH != 11:
        a(f"s_lshl_b32 {sT0}, {sWAVE}, {WSH}")
        a(f"v_add_u32 {vV}, {sT0}, {vL16}")
    a.wait_vm(max(tE, tk["WQ"]))
    a(f"s_mov_b32 {sT0}, 1664525")
    a(f"v_mul_lo_u32 {vA}, {vTAG}, {sT0}")
    a(f"v_add_u32 {vA}, 1013904223, {vA}")
    a(f"v_lshrrev_b32 {vB_}, 13, {vA}")
    a(f"v_xor_b32 {vA}, {vA}, {vB_}")
    a(f"v_and_b32 {vA}, 0x7e7e7e7e, {vA}")
    a(f"v_or_b32 {vA}, 0x01010101, {vA}")
    a(f"v_add_u32 {vTAG}, {vTAG}, {vA}")
    vTR1, vBX = "v116", "v117"
    a(f"s_lshl_b32 {sT0}, {sWAVE}, 5")
    a(f"v_add_u32 {vTR1}, {sT0}, {vTR}")
    a(f"v_and_b32 {vA}, 3, {vLANE}")
    a(f"v_lshlrev_b32 {vA}, 11, {vA}")
    a(f"v_add_u32 {vA}, {vA}, {vSQ}")
    a(f"s_lshl_b32 {sT0}, {sKQ}, 9")
    a(f"s_add_u32 {sT0}, {sT0}, {L_XN}")
    a(f"v_add_u32 {vBX}, {sT0}, {vA}")
    vBY = vBX
    if wsplit == 3:
        vBY = "v125"
        a(f"s_lshl_b32 {sT0}, {sKQ1}, 9")
        a(f"s_add_u32 {sT0}, {sT0}, {L_XN}")
        a(f"v_add_u32 {vBY}, {sT0}, {vA}")
    a(f"v_add_u32 v118, 32768, {vTR1}")
    a.lgkm(0)
    a("s_barrier")
    stamp("w")
    mats = [(vTR1, 0, 0), (vTR1, L_W1, 1)] + ([("v118", L_W1B - 32768, 1)] if wsplit >= 2 else [])
    AW = [V0, V0 + 64]
    BW = [V0 + 32, V0 + 96]
    ACC = [D0, D0 + 4, D0 + 8]
    a.cap = cap
    if par:
        a.cap = par[1]
        a.soft = (sLAG, par[0])
    a.feed(idx[f"K{kpre+1}"], P["proj"])
    def project(mi):
        vt, lw, bx = mats[mi]
        for ks in range(8):
            for hh in range(2):
                a(f"ds_read_b64_tr_b16 {vq(AW[mi] + 4*ks + 2*hh, 2)}, {vt} offset:{lw + ks*4096 + hh*512}")
            if mi < 2:
                a(f"ds_read_b128 {vq(BW[bx] + 4*ks)}, {vBY if bx else vBX} offset:{8192*bx + ks*64}")
            if ks == 3:
                a.lgkm(0)
        a.lgkm(0)
        for ks in range(8):
            c = "0" if ks == 0 else vq(ACC[mi])
            if mi == 0 and qemb:
                a(f"v_mfma_f32_16x16x32_bf16 {vq(ACC[mi])}, {vq(AW[mi] + 4*ks)}, {vq(BW[bx] + 4*ks)}, {c}")
            else:
                a(f"v_mfma_f32_16x16x32_bf16 {vq(ACC[mi])}, {vq(BW[bx] + 4*ks)}, {vq(AW[mi] + 4*ks)}, {c}")
    project(0)
    a.nofeed()
    PB = D0 + 12
    nm = 1
    TB1 = ["v120", "v121", "v122", "v124"]
    tag_bytes(TB1)
    a(f"v_mov_b32 v{PB+1}, {vTAG}")
    a(f"s_lshl_b32 {sT0}, {sKQ}, {15 - qemb}")
    a(f"s_lshl_b32 {sT1}, {sCG}, {9 - qemb}")
    a(f"s_add_u32 {sT0}, {sT0}, {sT1}")
    a(f"s_lshl_b32 {sT1}, {sWAVE}, {7 - qemb}")
    a(f"s_add_u32 {sT0}, {sT0}, {sT1}")
    a(f"s_add_u32 {sT0}, {sT0}, {QP}")
    if not qemb:
        a(f"v_mov_b32 v{PB}, v{ACC[0]}")
        for r in range(1, 4):
            a(f"v_mov_b32_dpp v{PB}, v{ACC[0] + r} quad_perm:[0,1,2,3] row_mask:{hex(1 << r)} bank_mask:0xf")
    for mi in range(1 - qemb, nm):
        for r in range(4):
            a(f"v_add_u32 v{ACC[mi] + r}, 0x80, v{ACC[mi] + r}")
        for r in range(4):
            a(f"v_bfi_b32 v{ACC[mi] + r}, {sT2}, {TB1[r]}, v{ACC[mi] + r}")
    if qemb:
        a(f"s_mov_b32 exec_lo, 0x000f000f")
        a(f"s_mov_b32 exec_hi, 0x000f000f")
        a(f"buffer_store_dwordx4 {vq(ACC[0])}, {vPUB}, {srd(rWS)}, {sT0} offen sc1")
    else:
        a(f"buffer_store_dwordx2 {vq(PB, 2)}, {vPUB}, {srd(rWS)}, {sT0} offen sc1")
    with wave0("rg"):
        a(f"s_lshl_b32 {sT0}, {sW4C}, 4")
        a(f"s_lshl_b32 {sT1}, {sRG}, 7")
        a(f"s_add_u32 {sT0}, {sT0}, {sT1}")
        a(f"s_add_u32 {sT0}, {sT0}, {RG}")
        a(f"v_mov_b32 v{PB+6}, {sLOC}")
        a(f"v_mov_b32 v{PB+7}, {vTAG}")
        a(f"v_lshlrev_b32 {vA}, 3, {vLANE}")
        a(f"s_mov_b64 exec, 0xffff")
        a(f"buffer_store_dwordx2 {vq(PB+6, 2)}, {vA}, {srd(rWS)}, {sT0} offen sc1")
        a(f"s_mov_b64 exec, -1")
    stamp("qpub")
    vT16 = "v119"
    a(f"v_lshlrev_b32 {vT16}, 4, {vTID}")
    GQ = S0
    GH0, GH = GM[5], D0
    vLC, vFH, vB1h = f"v{S0}", f"v{S0+1}", f"v{S0+2}"
    NQ = 4 if qemb else 8
    if qemb:
        GH0 = GQ + 16

    def issue_h(fl, js=None):
        return a(f"buffer_load_dwordx4 {vq(GH0)}, {vLC}, {srd(rWS)}, 0 offen{fl}")

    late.update(issue_h=issue_h, vB1h=vB1h)

    def issue_qh(fl, js=range(NQ)):
        t = None
        for j in js:
            if j < NQ:
                a(f"s_add_u32 {sT1}, {sT0}, {j*16384 if qemb else (j >> 1)*32768 + (j & 1)*4096}")
                t = a(f"buffer_load_dwordx4 {vq(GQ + 4*j)}, {vT16}, {srd(rWS)}, {sT1} offen{fl}")
            else:
                t = a(f"buffer_load_dwordx4 {vq(GH0)}, {vLC}, {srd(rWS)}, {sT2} offen{fl}")
        return t

    a(f"s_lshl_b32 {sT0}, {sB}, {17 - qemb}")
    a(f"s_lshl_b32 {sT1}, {sHKV}, {13 - qemb}")
    a(f"s_add_u32 {sT0}, {sT0}, {sT1}")
    a(f"s_add_u32 {sT0}, {sT0}, {QP}")
    order = [f"K{t}" for t in range(8)] + [f"V{t}" for t in range(8)]
    a.flush(idx[order[gpos - 1]])
    a.room(9)
    if "noq" not in dbg:
        tG = issue_qh(fq)
    a.flush(idx[order[gpos - 1 + gafter]])
    stamp("g_iss")
    if "noq" not in dbg:
      if qemb:
        check_loop("qh", [], issue_qh, tG, emb=TB1, equads=[GQ + 4*i for i in range(5)], clean=GQ + 20)
      else:
        check_loop("qh", [GQ + 4*i for i in range(8)], issue_qh, tG)
    stamp("g_ok")
    a.soft = None
    a.cap = capq or cap
    base = min(a.fi, idx[lqk] - 8)
    a.feed(base + 8, P["qh"])
    if qemb:
        GQ += 20
        for r in range(4):
            a(f"v_add_f32 v{GQ+r}, v{GQ+r}, v{GQ+4+r}")
            a(f"v_add_f32 v{GQ+8+r}, v{GQ+8+r}, v{GQ+12+r}")
        for r in range(4):
            a(f"v_add_f32 v{GQ+r}, v{GQ+r}, v{GQ+8+r}")
        a(f"v_cvt_pk_bf16_f32 v{GQ}, v{GQ}, v{GQ+1}")
        a(f"v_cvt_pk_bf16_f32 v{GQ+1}, v{GQ+2}, v{GQ+3}")
        a(f"v_lshlrev_b32 {vA}, 3, {vTID}")
        a(f"v_add_u32 {vA}, {L_Q}, {vA}")
        a(f"ds_write_b64 {vA}, {vq(GQ, 2)}")
    else:
        for hf in range(2):
            for c in (0, 2):
                r = GQ + 4*hf + c
                a(f"v_add_f32 v{r}, v{r}, v{r+8}")
                a(f"v_add_f32 v{r+16}, v{r+16}, v{r+24}")
            for c in (0, 2):
                r = GQ + 4*hf + c
                a(f"v_add_f32 v{r}, v{r}, v{r+16}")
            a(f"v_cvt_pk_bf16_f32 v{GQ+4*hf}, v{GQ+4*hf}, v{GQ+4*hf+2}")
        a(f"v_lshlrev_b32 {vA}, 2, {vTID}")
        a(f"v_add_u32 {vA}, {L_Q}, {vA}")
        a(f"ds_write_b32 {vA}, v{GQ}")
        a(f"ds_write_b32 {vA}, v{GQ+4} offset:1024")
    def finish_h():
        check_loop("h", [], issue_h, tok["Hm"], emb=TB, equads=[GH0], clean=GH)
        vB1 = vB1h
        U = [f"v{GH+r}" for r in range(4)]
        T = [f"v{GH+4+r}" for r in range(4)]
        b0 = f"v{GH+8}"
        rows_reduce("v_add_f32", U, T)
        a(f"v_and_b32 {vB1}, 0xffff0000, {vB1}")
        for k in range(2):
            a(f"v_cvt_pk_bf16_f32 {T[k]}, {U[2*k]}, {U[2*k+1]}")
        for k in range(2):
            unpack(U[2*k], U[2*k+1], T[k])
        for u in U:
            a(f"v_add_f32 {u}, {u}, {vB1}")
        for k in range(2):
            a(f"v_cvt_pk_bf16_f32 {T[k]}, {U[2*k]}, {U[2*k+1]}")
        for k in range(2):
            unpack(U[2*k], U[2*k+1], T[k])
        c1 = -2.0 * 0.7978845608028654 * 1.4426950408889634
        c2 = c1 * 0.044715
        a(f"v_mov_b32 {b0}, {f32(c1)}")
        a(f"s_mov_b32 {sT0}, {f32(c2)}")
        UT = list(zip(U, T))
        for (u, t) in UT:
            a(f"v_mul_f32 {t}, {u}, {u}")
        for (u, t) in UT:
            a(f"v_fma_f32 {t}, {t}, {sT0}, {b0}")
        for (u, t) in UT:
            a(f"v_mul_f32 {t}, {u}, {t}")
        for (u, t) in UT:
            a(f"v_exp_f32 {t}, {t}")
        for (u, t) in UT:
            a(f"v_add_f32 {t}, 1.0, {t}")
        for (u, t) in UT:
            a(f"v_rcp_f32 {t}, {t}")
        for (u, t) in UT:
            a(f"v_mul_f32 {t}, {u}, {t}")
        a(f"v_cvt_pk_bf16_f32 {U[0]}, {T[0]}, {T[1]}")
        a(f"v_cvt_pk_bf16_f32 {U[2]}, {T[2]}, {T[3]}")
        a(f"v_mov_b32 {U[1]}, {vTAG}")
        a(f"v_mov_b32 {U[3]}, {vTAG}")
        a(f"s_mov_b32 {sT0}, {FH}")
        a(f"s_mov_b64 exec, 0x3fff")
        a.room(1)
        a(f"buffer_store_dwordx4 {vq(GH)}, {vFH}, {srd(rWS)}, {sT0} offen sc1")
        a(f"s_mov_b64 exec, -1")

    a(f"v_and_b32 {vA}, 7, {vLANE}")
    a(f"v_lshlrev_b32 {vA}, 8, {vA}")
    a(f"v_lshl_add_u32 {vA}, {vSQ}, 1, {vA}")
    a(f"v_bfe_u32 {vC}, {vLANE}, 3, 1")
    a(f"v_lshl_add_u32 {vA}, {vC}, 4, {vA}")
    a(f"v_add_u32 {vA}, {L_Q}, {vA}")
    a.nofeed()
    a.flush(base + 8)
    a.wait_vm(tok["W1"])
    a.lgkm(0)
    a("s_barrier")
    a(f"ds_read_b128 {vq(Q0)}, {vA}")
    a(f"ds_read_b128 {vq(Q0+4)}, {vA} offset:128")
    a(f"v_mov_b32 {vMX}, 0xff800000")
    a(f"v_xor_b32 {vW4b}, 0x80, {vW4}")
    a.feed(idx[lqk], P["qk"])
    project(1)
    a(f"s_lshl_b32 {sT1}, {sKQ}, 16")
    a(f"s_lshl_b32 {sT2}, {sCG1}, 10")
    a(f"s_add_u32 {sT1}, {sT1}, {sT2}")
    a(f"s_lshl_b32 {sT2}, {sWAVE}, 8")
    a(f"s_add_u32 {sT1}, {sT1}, {sT2}")
    a(f"s_add_u32 {sT1}, {sT1}, {HP}")
    a(f"s_movk_i32 {sT2}, 0xff")
    for r in range(4):
        a(f"v_add_u32 v{ACC[1] + r}, 0x80, v{ACC[1] + r}")
    for r in range(4):
        a(f"v_bfi_b32 v{ACC[1] + r}, {sT2}, {TB1[r]}, v{ACC[1] + r}")
    a.nofeed()
    a(f"s_mov_b64 exec, 0xffff")
    a(f"buffer_store_dwordx4 {vq(ACC[1])}, {vL16}, {srd(rWS)}, {sT1} offen sc1")
    a(f"s_mov_b64 exec, -1")
    a.lgkm(0)

    def qk_mfma(t):
        if "noqk" in dbg:
            return
        d = D0 + 16 * (t & 1)
        wait(f"K{t}")
        for j in range(2):
            for u in range(4):
                c = "0" if j == 0 else vq(d + 4*u)
                a(f"v_mfma_f32_16x16x32_bf16 {vq(d + 4*u)}, {aq(32*t + 8*u + 4*j)}, {vq(Q0 + 4*j)}, {c}")

    def qk_post(t):
        if "nosm" in dbg:
            return
        d = D0 + 16 * (t & 1)
        s = S0 + 8 * t
        for u in range(4):
            for tt in range(2):
                a(f"v_add_f32_dpp v{s + 2*u + tt}, v{d + 4*u + 2*tt + 1}, v{d + 4*u + 2*tt} row_ror:8 row_mask:0xf bank_mask:0xf")
        for u in range(4):
            a(f"v_cvt_pk_bf16_f32 v{T0+u}, v{s+2*u}, v{s+2*u+1}")
        for u in range(4):
            unpack(f"v{s+2*u}", f"v{s+2*u+1}", f"v{T0+u}")
        for i in range(8):
            a(f"v_mul_f32 v{s+i}, {sSCALE}, v{s+i}")
        for u in range(4):
            a(f"v_cvt_pk_bf16_f32 v{T0+u}, v{s+2*u}, v{s+2*u+1}")
        for u in range(4):
            unpack(f"v{s+2*u}", f"v{s+2*u+1}", f"v{T0+u}")
        for u in range(4):
            a(f"v_max3_f32 {vMX}, {vMX}, v{s+2*u}, v{s+2*u+1}")

    a.feed(idx[lqk], P["qk"])
    qk_mfma(0)
    for t in range(8):
        if t < 7:
            if t == 5:
                a.flush(idx[lqk])
            qk_mfma(t + 1)
        qk_post(t)
    stamp("qk")
    a.feed(idx[lexp], P["exp"])
    vNM = f"v{T0+5}"; vL2 = f"v{T0+6}"
    rows_reduce("v_max_f32", [vMX], [vNM])
    a(f"v_mul_f32 {vNM}, {sLOG2E}, {vMX}")
    a(f"v_mov_b32 {vL}, 0")
    a(f"v_mov_b32 {vL2}, 0")
    for t in range(0 if "nosm" in dbg else 8):
        s = S0 + 8 * t
        for i in range(8):
            a(f"v_fma_f32 v{s+i}, v{s+i}, {sLOG2E}, -{vNM}")
        for i in range(8):
            a(f"v_exp_f32 v{s+i}, v{s+i}")
        for u in range(4):
            a(f"v_add_f32 {vL}, {vL}, v{s+2*u}")
            a(f"v_add_f32 {vL2}, {vL2}, v{s+2*u+1}")
        for u in range(4):
            a(f"v_cvt_pk_bf16_f32 v{s+u}, v{s+2*u}, v{s+2*u+1}")
    a(f"v_add_f32 {vL}, {vL}, {vL2}")
    rows_reduce("v_add_f32", [vL], [vL2])
    a(f"s_lshl_b32 {sT0}, {sB}, 2")
    a(f"s_add_u32 {sT0}, {sT0}, {sHKV}")
    a(f"s_lshl_b32 {sMLG}, {sT0}, 13")
    a(f"s_add_u32 {sMLG}, {sMLG}, {ML}")
    a(f"s_lshl_b32 {sT0}, {sS}, 9")
    a(f"s_lshl_b32 {sT1}, {sWAVE}, 7")
    a(f"s_add_u32 {sT0}, {sT0}, {sT1}")
    a(f"s_add_u32 {sT0}, {sT0}, {sMLG}")
    a(f"s_lshl_b32 {sT1}, {sWAVE}, 11")
    a(f"s_add_u32 {sMLG}, {sMLG}, {sT1}")
    a(f"v_mov_b32 v{D0}, {vMX}")
    a(f"v_mov_b32 v{D0+1}, {vTAG}")
    a(f"v_mov_b32 v{D0+2}, {vL}")
    a(f"v_mov_b32 v{D0+3}, {vTAG}")
    a.nofeed()
    a(f"s_mov_b64 exec, 0xff")
    a.room(1)
    if "nomls" not in dbg:
        a(f"buffer_store_dwordx4 {vq(D0)}, {vL16}, {srd(rWS)}, {sT0} offen sc1")
    a(f"s_mov_b64 exec, -1")
    if theta:
        a(f"s_lshl_b32 {sT0}, {sS}, 9")
        a(f"s_add_u32 {sT0}, {sT0}, {ML + 4}")
        a(f"v_and_b32 {vA}, 15, {vLANE}")
        a(f"v_lshlrev_b32 {vA}, 13, {vA}")
        tPB = a(f"buffer_load_dword v{T0+5}, {vA}, {srd(rWS)}, {sT0} offen sc1")
    a.feed(idx[lexp], P["exp"])
    vRW = f"v{T0}"; vRR = f"v{T0+1}"; vOP = f"v{T0+2}"; vOW = f"v{T0+3}"; vFW = f"v{T0+7}"
    a(f"v_lshrrev_b32 {vA}, 7, {vTR}")
    a(f"v_and_b32 {vB_}, 3, {vA}")
    a(f"v_bfe_u32 {vC}, {vA}, 3, 1")
    a(f"v_lshl_or_b32 {vB_}, {vC}, 2, {vB_}")
    a(f"s_lshl_b32 {sT0}, {sWAVE}, 1")
    a(f"v_xor_b32 {vB_}, {sT0}, {vB_}")
    a(f"v_and_b32 {vC}, 0x18, {vTR}")
    a(f"v_lshl_add_u32 {vC}, {vB_}, 5, {vC}")
    a(f"v_lshl_add_u32 {vTR4}, {vA}, 8, {vC}")
    a(f"v_add_u32 {vTR4}, {L_WO}, {vTR4}")
    a(f"v_xor_b32 {vTR5}, 32, {vTR4}")
    a(f"v_and_b32 {vC}, 3, {vLANE}")
    a(f"v_lshlrev_b32 {vC}, 8, {vC}")
    a(f"v_add_u32 {vBO}, {vC}, {vSQ}")
    a(f"v_add_u32 {vBO}, {L_OL}, {vBO}")
    a(f"v_and_b32 {vC}, 7, {vLANE}")
    a(f"v_mul_u32_u24 {vRW}, {RED_H}, {vC}")
    a(f"v_lshl_add_u32 {vRW}, {vSQ}, 3, {vRW}")
    a(f"s_mul_i32 {sT0}, {sWAVE}, {RED_W}")
    a(f"v_add_u32 {vRW}, {sT0}, {vRW}")
    if tailopt:
        a(f"v_bfe_u32 {vC}, {vLANE}, 3, 1")
        a(f"v_lshl_add_u32 {vRW}, {vC}, 15, {vRW}")
    a(f"v_lshrrev_b32 {vC}, 5, {vTID}")
    a(f"v_mul_u32_u24 {vRR}, {RED_H}, {vC}")
    a(f"v_lshlrev_b32 {vMR}, 4, {vC}")
    a(f"v_add_u32 {vMR}, {L_F}, {vMR}")
    a(f"v_lshlrev_b32 {vOP}, 15, {vC}")
    a(f"v_and_b32 {vC}, 31, {vTID}")
    a(f"v_lshl_add_u32 {vRR}, {vC}, 4, {vRR}")
    a(f"v_lshl_add_u32 {vOP}, {vC}, 4, {vOP}")
    a(f"v_and_b32 {vL}, 0x70, {vL16}")
    a(f"v_add_u32 {vL}, {L_Q}, {vL}")
    a(f"s_lshl_b32 {sT0}, {sWAVE}, 2")
    a(f"v_add_u32 {vFW}, {sT0}, {vL}")
    a(f"v_bfe_u32 {vC}, {vLANE}, 3, 2")
    a(f"v_lshlrev_b32 {vOW}, 6, {vC}")
    a(f"v_and_b32 {vC}, 7, {vLANE}")
    a(f"v_lshl_add_u32 {vOW}, {vC}, 1, {vOW}")
    a(f"s_lshl_b32 {sT0}, {sWAVE}, 8")
    a(f"s_add_u32 {sT0}, {sT0}, {L_OL}")
    a(f"v_add_u32 {vOW}, {sT0}, {vOW}")
    a(f"v_lshrrev_b32 {vC}, 3, {vLANE}")
    a(f"v_and_b32 {vPUB}, 0x70, {vL16}")
    a(f"v_lshl_add_u32 {vPUB}, {vC}, 12, {vPUB}")
    a(f"v_and_b32 {vB2}, 3, {vLANE}")
    a(f"v_lshlrev_b32 {vB2}, 1, {vB2}")
    a(f"s_lshl_b32 {sT0}, {sRG}, 3")
    a(f"s_add_u32 {sT0}, {sT0}, {sW4C}")
    a(f"v_add_u32 {vB2}, {sT0}, {vB2}")
    a(f"v_bfe_u32 {vC}, {vLANE}, 2, 2")
    a(f"v_lshl_add_u32 {vOUT}, {vC}, 11, {vB2}")
    a(f"v_lshrrev_b32 {vC}, 2, {vLANE}")
    a(f"v_and_b32 {vX1}, 0x30, {vL16}")
    a(f"v_lshl_add_u32 {vX1}, {vC}, 7, {vX1}")
    a(f"s_lshl_b32 {sT0}, {sHKV}, 18")
    a(f"s_lshl_b32 {sT1}, {sB}, 13")
    a(f"s_add_u32 {sT0}, {sT0}, {sT1}")
    a(f"s_lshl_b32 {sT1}, {sS}, 9")
    a(f"s_add_u32 {sT0}, {sT0}, {sT1}")
    a(f"s_add_u32 {sOPO}, {sT0}, {OP}")
    a(f"s_lshl_b32 {sT0}, {sRG}, 15")
    a(f"s_lshl_b32 {sT1}, {sWAVE}, 13")
    a(f"s_add_u32 {sT0}, {sT0}, {sT1}")
    a(f"s_add_u32 {sOPG}, {sT0}, {OP}")
    a(f"s_lshl_b32 {sT2}, {sW4C}, 8")
    a(f"s_lshl_b32 {sT0}, {sWAVE}, 14")
    a(f"s_add_u32 {sT2}, {sT2}, {sT0}")
    a(f"s_lshl_b32 {sT0}, {sRG}, 7")
    a(f"s_add_u32 {sT2}, {sT2}, {sT0}")
    a(f"s_add_u32 {sT2}, {sT2}, {ZP}")
    a(f"s_lshl_b32 {sT0}, {sW4C}, 4")
    a(f"s_add_u32 {sT0}, {sT0}, {RG}")
    a(f"v_and_b32 {vC}, 31, {vLANE}")
    a(f"v_lshlrev_b32 {vC}, 7, {vC}")
    a(f"v_add_u32 {vCWA}, {sT0}, {vC}")
    a(f"v_and_b32 {vPR}, 15, {vLANE}")
    a(f"v_lshlrev_b32 {vPR}, 9, {vPR}")
    a(f"v_and_b32 {vC}, 31, {vLANE}")
    a(f"v_min_u32 {vC}, 27, {vC}")
    a(f"s_lshl_b32 {sT0}, {sRG}, 2")
    a(f"s_add_u32 {sT0}, {sT0}, {sWAVE}")
    a(f"s_mul_i32 {sT0}, {sT0}, 448")
    a(f"s_add_u32 {sT0}, {sT0}, {FH}")
    a(f"v_lshlrev_b32 {vC}, 4, {vC}")
    a(f"v_add_u32 {vFG}, {sT0}, {vC}")
    a.nofeed()
    stamp("sm")

    def factors2():
        PM, PL = GM[2], GM[3]
        m_, t_, l_ = vA, vB_, vC
        a(f"ds_read_b128 {vq(PM)}, {vL}")
        a(f"ds_read_b128 {vq(PL)}, {vL} offset:128")
        a.lgkm(0)
        a(f"v_max3_f32 {m_}, v{PM}, v{PM+1}, v{PM+2}")
        a(f"v_max_f32 {m_}, {m_}, v{PM+3}")
        regs = [f"v{PM+k}" for k in range(4)] + [vMX]
        for r in regs:
            a(f"v_sub_f32 {r}, {r}, {m_}")
        for r in regs:
            a(f"v_mul_f32 {r}, {sLOG2E}, {r}")
        for r in regs:
            a(f"v_exp_f32 {r}, {r}")
        a(f"v_mul_f32 {l_}, v{PM}, v{PL}")
        for k in range(1, 4):
            a(f"v_fmac_f32 {l_}, v{PM+k}, v{PL+k}")
        a(f"v_rcp_f32 {t_}, {l_}")
        a(f"v_fma_f32 {m_}, -{l_}, {t_}, 1.0")
        a(f"v_fma_f32 {t_}, {m_}, {t_}, {t_}")
        a(f"v_mul_f32 {vMX}, {vMX}, {t_}")
        a(f"s_mov_b64 exec, 0xff")
        a(f"ds_write_b32 {vFW}, {vMX} offset:{L_F - L_Q}")
        a(f"s_mov_b64 exec, -1")

    def factors():
        check_loop("ml", GM[:2], issue_ml, tok["ML"])
        m_, t_, l_ = vA, vB_, vC
        a(f"v_max_f32 {m_}, v{GM[0]}, v{GM[1]}")
        a(f"v_max_f32_dpp {m_}, {m_}, {m_} row_ror:8 row_mask:0xf bank_mask:0xf")
        rows_reduce("v_max_f32", [m_], [t_])
        for j in range(2):
            a(f"v_sub_f32 v{GM[j]}, v{GM[j]}, {m_}")
        for j in range(2):
            a(f"v_mul_f32 v{GM[j]}, {sLOG2E}, v{GM[j]}")
        for j in range(2):
            a(f"v_exp_f32 v{GM[j]}, v{GM[j]}")
        a(f"v_mul_f32 {l_}, v{GM[0]}, v{GM[0]+2}")
        a(f"v_fmac_f32 {l_}, v{GM[1]}, v{GM[1]+2}")
        a(f"v_add_f32_dpp {l_}, {l_}, {l_} row_ror:8 row_mask:0xf bank_mask:0xf")
        rows_reduce("v_add_f32", [l_], [t_])
        a(f"ds_write_b32 {vFW}, {m_}")
        a(f"ds_write_b32 {vFW}, {l_} offset:128")
        a.wait_vm(tok["ML"] + 1)
        a(f"v_xor_b32 {vCW0}, {sLOC}, {vCW0}")
        a(f"v_xor_b32 {vCW1}, {vTAG}, {vCW1}")
        a(f"v_or_b32 {vCW0}, {vCW0}, {vCW1}")
        a(f"v_cmp_ne_u32 vcc, 0, {vCW0}")
        a(f"s_or_b32 {sLOC}, vcc_lo, vcc_hi")
        if not zloc:
            a(f"s_mov_b32 {sLOC}, 1")

    def pv(t):
        if "nopv" in dbg:
            return
        base = V0 + 32 * (t % 4)
        for e in range(8):
            dd = e >> 1
            sel = sSELHI if e & 1 else sSELLO
            for u in range(4):
                a(f"v_perm_b32 v{D0 + 4*e + u}, v{base + 8*u + 4 + dd}, v{base + 8*u + dd}, {sel}")
            if e >= 1:
                ee = e - 1
                c = "0" if t == 0 else aq(4*ee)
                a(f"v_mfma_f32_16x16x32_bf16 {aq(4*ee)}, {vq(D0 + 4*ee)}, {vq(S0 + 8*t)}, {c}")
            if t == 7 and tailopt and e >= 3:
                a(f"ds_write_b128 {vRW}, {aq(4*(e-3))} offset:{L_RED + 16*(e-3)}")
        c = "0" if t == 0 else aq(28)
        a(f"v_mfma_f32_16x16x32_bf16 {aq(28)}, {vq(D0 + 28)}, {vq(S0 + 8*t)}, {c}")

    TB = ["v100", "v101", "v102", "v103"] if tailopt else ["v44", "v45", "v46", "v47"]
    sFF = sCG
    sZG = sKQ
    idx["WOa"] = idx["PRE"] + wo_early
    idx["WOb"] = max(idx["WOa"], idx["WOa"] + wo7)
    idx["W2a"] = min(idx["PRE"], idx["V7"] + w2a)
    nxt = [f"V{t + lag}" for t in range(8 - lag)] + ["V7"] * (lag - 3 if lag > 3 else 0)
    nxt += {3: ["W2a", "WOa", "WOb"], 2: ["WOa", "WOb"], 1: ["WOb"]}[lag]
    a.flush(idx[lexp])
    a.cap = capv or cap
    if par:
        a.cap = par[3]
        a.soft = (sLAG, par[2])
    aft = ["V4", "V5", "V6", "V7"] + nxt[4:] if burst else nxt
    for t in range(8):
        if "novw" not in dbg:
            wait(f"V{t}")
        a.feed(idx[nxt[t]], P["pv"])
        pv(t)
        a.nofeed()
        a.flush(idx[aft[t]])
        if t == 0:
            tag_bytes(TB)
            a(f"v_and_b32 {vA}, 15, {vLANE}")
            a(f"v_min_u32 {vA}, 13, {vA}")
            a(f"s_mul_i32 {sT0}, s2, 14")
            a(f"v_add_u32 {vA}, {sT0}, {vA}")
            a(f"v_lshlrev_b32 {vFH}, 4, {vA}")
            a(f"v_lshl_add_u32 {vLC}, {vSQ}, 12, {vFH}")
            a(f"v_add_u32 {vLC}, {HP}, {vLC}")
            a(f"v_lshlrev_b32 {vB1h}, 1, {vA}")
        if t == hpos - 1:
            with wave0("h"):
                finish_h()
        if t == 6 and tailopt:
            a(f"s_movk_i32 {sFF}, 0xff")
            a(f"s_lshr_b32 {sT0}, {sRG}, 1")
            a(f"s_lshl_b32 {sT0}, {sT0}, 12")
            a(f"s_lshl_b32 {sT1}, {sW4C}, 8")
            a(f"s_add_u32 {sT0}, {sT0}, {sT1}")
            a(f"s_and_b32 {sT1}, {sRG}, 1")
            a(f"s_lshl_b32 {sT1}, {sT1}, 6")
            a(f"s_add_u32 {sT0}, {sT0}, {sT1}")
            a(f"s_add_u32 {sZG}, {sT0}, {ZP}")
        if t == 0 and theta:
            a.wait_vm(tPB)
            a(f"v_cmp_eq_u32 vcc, v{T0+5}, {vTAG}")
            a(f"s_bcnt1_i32_b64 {sT0}, vcc")
            a(f"s_cmp_ge_u32 {sT0}, {4 * theta}")
            a(f"s_cselect_b32 {sLAG}, 1, 0")
            if stamps and "pcnt" in stamps:
                lo, hi = STAMPS[stamps.index("pcnt")]
                a(f"s_mov_b32 s{lo}, {sT0}")
                a(f"s_mov_b32 s{hi}, 0")
            a.cap = caphi
            a.soft = (sLAG, caplo)
        if t == tsw:
            a.cap = cap2
        if t == 7 - lag:
            a.soft = None
            a.cap = capw
        if t == facpos and "noqml" not in dbg:
            factors()
            stamp("fac")
        if t == vbar:
            a.lgkm(0)
            a("s_barrier")
            factors2()
    stamp("pv")
    if "allst" in dbg:
        a.flush(idx["WO"])
        a("s_waitcnt vmcnt(0)")
        a.vm_done = a.vm_issued
        a("s_barrier")
        stamp("wo")
        a(f"s_cmp_lg_u32 {sWAVE}, 0")
        a(f"s_cbranch_scc1 L_end")
        a(f"s_branch L_stamps")
    if tailopt:
        for e in range(5, 8):
            a(f"ds_write_b128 {vRW}, {aq(4*e)} offset:{L_RED + 16*e}")
    else:
        a(f"s_mov_b32 exec_lo, 0x00ff00ff")
        a(f"s_mov_b32 exec_hi, 0x00ff00ff")
        for e in range(8):
            a(f"ds_write_b128 {vRW}, {aq(4*e)} offset:{L_RED + 16*e}")
        a(f"s_mov_b64 exec, -1")
    a.flush(min(idx["WO"], a.fi + wpre))
    R = D0
    if not tailopt:
        tag_bytes(TB)
        a(f"s_movk_i32 {sFF}, 0xff")
    a(f"s_add_u32 {sT0}, {sOPG}, 4096")
    if w2b5:
        a.wait_vm(tok["W2"])
    a.lgkm(0)
    stamp("red_w")
    a("s_barrier")
    stamp("b5")
    a(f"ds_read_b128 {vq(R+16)}, {vMR}")
    for w in range(4):
        a(f"ds_read_b128 {vq(R + 4*w)}, {vRR} offset:{L_RED + w*RED_W}")
    a.flush(min(idx["WO"], a.fi + wmid))
    for w in range(4):
        a.lgkm(0 if stamps else 3 - w)
        for r in range(4):
            if w == 0:
                a(f"v_mul_f32 v{R+r}, v{R+16}, v{R+r}")
            else:
                a(f"v_fmac_f32 v{R+r}, v{R+16+w}, v{R+4*w+r}")
    for r in range(4):
        a(f"v_bfi_b32 v{48+r}, {sFF}, {TB[r]}, v{R+r}")
    a.grace_n = gracew

    def op_store():
        return a(f"buffer_store_dwordx4 {vq(48)}, {vOP}, {srd(rWS)}, {sOPO} offen sc1")

    if not stlate:
        tST = op_store()
        if "ack" in dbg:
            stamp("opub")
            a.wait_vm(tST)
            stamp("ack")
    if "ack" not in dbg:
        stamp("opub")
    GO = V0

    def issue_op(fl, js=range(8)):
        t = None
        for j in js:
            so = sOPG if j < 4 else sT0
            t = a(f"buffer_load_dwordx4 {vq(GO + 4*j)}, {vL16}, {srd(rWS)}, {so} offen offset:{1024*(j&3)}{fl}")
        return t

    GC = V0 + 96
    if opfirst:
        tOP = issue_op(fo)
    if opmid:
        a.flush(idx["W2"] + opmid - 1)
        tOP = issue_op(fo)
    if probe:
        a.wait_vm(tok["PR"])
        a(f"v_xor_b32 {vPRD}, {vPRD}, {TB[0]}")
        a(f"v_and_b32 {vPRD}, 0xff, {vPRD}")
        a(f"v_cmp_eq_u32 vcc, 0, {vPRD}")
        a(f"s_bcnt1_i32_b64 {sT1}, vcc")
        if stamps and "pcnt" in stamps:
            lo, hi = STAMPS[stamps.index("pcnt")]
            a(f"s_mov_b32 s{lo}, {sT1}")
            a(f"s_mov_b32 s{hi}, 0")
        a(f"s_cmp_ge_u32 {sT1}, {4 * probe}")
        a(f"s_cbranch_scc1 L_wfast")
        sv = (a.vm_issued, a.vm_done, a.fi)
        a.cap, a.grace = capslow, capslow - 1
        a.flush(idx["WO"])
        for j in range(8):
            a.room(1, capslow)
            issue_op(fo, [j])
        a(f"s_branch L_wdone")
        a.label("L_wfast")
        a.vm_issued, a.vm_done, a.fi = sv
        a.cap = 63
        a.flush(idx["WO"])
        tOP = issue_op(fo)
        a.label("L_wdone")
    a.flush(idx["WO"])
    stamp("wiss")
    if "wl" in dbg.split():
        a.wait_vm(tok["WO"])
        stamp("wl")
    if stlate == 1:
        op_store()
    if "exit" in dbg:
        a("s_waitcnt vmcnt(0)")
        a.vm_done = a.vm_issued
        stamp("wo")
        a(f"s_cmp_lg_u32 {sWAVE}, 0")
        a(f"s_cbranch_scc1 L_end")
        a(f"s_branch L_stamps")
    NOP = 4 if "halfop" in dbg else 1 if "oneop" in dbg else 8
    if "lateop" not in dbg and not opfirst and not opmid and not probe:
        tOP = issue_op(fo, range(NOP))
        if stlate == 2:
            op_store()
    AWO, AW2 = 64, 96
    Z = D0
    BH, BO = S0, S0 + 16
    stamp("giss")
    if "nofh" not in dbg:
        check_loop("fh", [GF], issue_fh, tok["FH"])
    a(f"v_and_b32 {vC}, 31, {vLANE}")
    a(f"v_cmp_gt_u32 vcc, 28, {vC}")
    a(f"s_lshl_b32 {sT1}, {sWAVE}, 6")
    a(f"s_add_u32 {sT1}, {sT1}, {L_HL}")
    a(f"v_lshl_add_u32 {vC}, {vC}, 1, {sT1}")
    a(f"v_cndmask_b32 v{GF}, 0, v{GF}, vcc")
    a(f"v_cndmask_b32 v{GF+2}, 0, v{GF+2}, vcc")
    a(f"ds_write_b16 {vC}, v{GF}")
    a(f"ds_write_b16_d16_hi {vC}, v{GF} offset:256")
    a(f"ds_write_b16 {vC}, v{GF+2} offset:512")
    a(f"ds_write_b16_d16_hi {vC}, v{GF+2} offset:768")
    a.lgkm(0)
    if not w2b5:
        a.wait_vm(tok["W2"])
        stamp("w2")
        a("s_barrier")
    stamp("w2b")
    for ks in range(4):
        a(f"ds_read_b128 {vq(BH + 4*ks)}, {vBO} offset:{L_HL - L_OL + 64*ks}")
    for (base, off) in ((AW2, 32768), (AWO, 0)):
        if base == AWO and opmid:
            break
        if base == AWO:
            if opfirst:
                check_loop("op1", [], issue_op, tOP, emb=TB, equads=[GO + 4*j for j in range(NOP)], clean=GC, once=True)
            a.wait_vm(tok["WO"])
            if "exit" not in dbg and "allst" not in dbg:
                stamp("wo")
            a("s_barrier")
        for ks in range(4):
            for c in range(2):
                for hh in range(2):
                    a(f"ds_read_b64_tr_b16 {aq(base + 16*c + 4*ks + 2*hh, 2)}, {vTR5 if c else vTR4} offset:{off + ks*8192 + hh*1024}")
            if ks == 1:
                a.lgkm(0)
        if base == AW2:
            a.lgkm(0)
            for ks in range(4):
                for c in range(2):
                    cc = "0" if ks == 0 else vq(Z + 4*c)
                    a(f"v_mfma_f32_16x16x32_bf16 {vq(Z + 4*c)}, {vq(BH + 4*ks)}, {aq(AW2 + 16*c + 4*ks)}, {cc}")
    if "lateop" in dbg:
        tOP = issue_op(fo, range(NOP))
    if "nochk" not in dbg:
      check_loop("op", [], issue_op, tOP, emb=TB, equads=[GO + 4*j for j in range(NOP)], clean=GC)
    GO = GC
    stamp("op_ok")
    O = V0 + 32
    if tailopt:
        for k in range(4):
            for r in (0, 2):
                a(f"v_pk_add_f32 {vq(O+4*k+r, 2)}, {vq(GO+8*k+r, 2)}, {vq(GO+8*k+4+r, 2)}")
        for k in (0, 8):
            for r in (0, 2):
                a(f"v_pk_add_f32 {vq(O+k+r, 2)}, {vq(O+k+r, 2)}, {vq(O+k+4+r, 2)}")
        for r in (0, 2):
            a(f"v_pk_add_f32 {vq(O+r, 2)}, {vq(O+r, 2)}, {vq(O+8+r, 2)}")
    else:
        for r in range(4):
            a(f"v_add_f32 v{O+r}, v{GO+r}, v{GO+4+r}")
            a(f"v_add_f32 v{O+4+r}, v{GO+8+r}, v{GO+12+r}")
            a(f"v_add_f32 v{O+8+r}, v{GO+16+r}, v{GO+20+r}")
            a(f"v_add_f32 v{O+12+r}, v{GO+24+r}, v{GO+28+r}")
        for r in range(4):
            a(f"v_add_f32 v{O+r}, v{O+r}, v{O+4+r}")
            a(f"v_add_f32 v{O+8+r}, v{O+8+r}, v{O+12+r}")
        for r in range(4):
            a(f"v_add_f32 v{O+r}, v{O+r}, v{O+8+r}")
    for r in range(4):
        a(f"v_mov_b32 v{O+4+r}, v{O+r}")
    for r in range(4):
        a(f"v_permlane32_swap_b32 v{O+r}, v{O+4+r}")
    for r in range(4):
        a(f"v_add_f32 v{O+r}, v{O+r}, v{O+4+r}")
    a(f"v_cvt_pk_bf16_f32 v{O}, v{O}, v{O+1}")
    a(f"v_cvt_pk_bf16_f32 v{O+2}, v{O+2}, v{O+3}")
    a(f"s_mov_b32 exec_hi, 0")
    a(f"ds_write_b16 {vOW}, v{O}")
    a(f"ds_write_b16_d16_hi {vOW}, v{O} offset:16")
    a(f"ds_write_b16 {vOW}, v{O+2} offset:32")
    a(f"ds_write_b16_d16_hi {vOW}, v{O+2} offset:48")
    a(f"s_mov_b64 exec, -1")
    a.lgkm(0)
    stamp("cmb")
    if opmid:
        a.wait_vm(tok["WO"])
        stamp("wo")
    a("s_barrier")
    stamp("b6")
    for ks in range(4):
        a(f"ds_read_b128 {vq(BO + 4*ks)}, {vBO} offset:{64*ks}")
        if opmid:
            for c in range(2):
                for hh in range(2):
                    a(f"ds_read_b64_tr_b16 {aq(AWO + 16*c + 4*ks + 2*hh, 2)}, {vTR5 if c else vTR4} offset:{ks*8192 + hh*1024}")
            if ks == 2:
                a.lgkm(0 if stamps else 10)
                for c in range(2):
                    a(f"v_mfma_f32_16x16x32_bf16 {vq(Z + 4*c)}, {vq(BO)}, {aq(AWO + 16*c)}, {vq(Z + 4*c)}")
    for ks in range(1 if opmid else 0, 4):
        a.lgkm(0 if stamps else (3 - ks) * (5 if opmid else 1))
        for c in range(2):
            a(f"v_mfma_f32_16x16x32_bf16 {vq(Z + 4*c)}, {vq(BO + 4*ks)}, {aq(AWO + 16*c + 4*ks)}, {vq(Z + 4*c)}")
    ZS = 48
    a(f"s_cmp_eq_u32 {sLOC}, 0")
    for r in range(4):
        a(f"v_mov_b32_dpp v{Z + r}, v{Z + 4 + r} quad_perm:[0,1,2,3] row_mask:0x2 bank_mask:0xf")
    for r in range(4):
        a(f"v_bfi_b32 v{ZS + r}, {sFF}, {TB[r]}, v{Z + r}")
    a(f"s_mov_b32 exec_hi, 0")
    a(f"s_cbranch_scc1 L_zplain")
    a(f"buffer_store_dwordx4 {vq(ZS)}, {vPUB}, {srd(rWS)}, {sT2} offen sc1")
    a(f"s_branch L_zdone")
    a.label("L_zplain")
    a.vm_issued -= 1
    a(f"buffer_store_dwordx4 {vq(ZS)}, {vPUB}, {srd(rWS)}, {sT2} offen")
    a.label("L_zdone")
    a(f"s_mov_b64 exec, -1")
    stamp("zpub")
    a(f"s_cmp_lg_u32 {sWAVE}, 0")
    a(f"s_cbranch_scc1 L_end")
    GZ = V0 + 64
    if not tailopt:
        a(f"s_lshr_b32 {sT0}, {sRG}, 1")
        a(f"s_lshl_b32 {sT0}, {sT0}, 12")
        a(f"s_lshl_b32 {sT1}, {sW4C}, 8")
        a(f"s_add_u32 {sT0}, {sT0}, {sT1}")
        a(f"s_and_b32 {sT1}, {sRG}, 1")
        a(f"s_lshl_b32 {sT1}, {sT1}, 6")
        a(f"s_add_u32 {sT0}, {sT0}, {sT1}")
        a(f"s_add_u32 {sZG}, {sT0}, {ZP}")

    def issue_z(fl, js=range(2)):
        t = None
        for j in js:
            t = a(f"buffer_load_dwordx4 {vq(GZ + 4*j)}, {vX1}, {srd(rWS)}, {sZG} offen offset:{2048*j}{fl}")
        return t

    tZ = issue_z(" sc1")
    x0, b0 = f"v{O}", f"v{O+1}"
    a(f"v_and_b32 {x0}, 0xffff0000, {vX}")
    a(f"v_and_b32 {b0}, 0xffff0000, {vB2}")
    a(f"v_add_f32 {x0}, {x0}, {b0}")
    check_loop("z", [], issue_z, tZ, emb=TB, equads=[GZ + 4*j for j in range(2)], clean=GZ + 8)
    GZ += 8
    stamp("z_ok")
    for r in range(4):
        a(f"v_add_f32 v{GZ+r}, v{GZ+r}, v{GZ+4+r}")
    for b in (4, 8):
        for r in range(4):
            a(f"v_add_f32_dpp v{GZ+r}, v{GZ+r}, v{GZ+r} row_ror:{b} row_mask:0xf bank_mask:0xf")
    for r in range(1, 4):
        a(f"v_mov_b32_dpp v{GZ}, v{GZ+r} quad_perm:[0,1,2,3] row_mask:0xf bank_mask:{hex(1 << r)}")
    rows_reduce("v_add_f32", [f"v{GZ}"], [f"v{GZ+1}"])
    a(f"v_add_f32 {x0}, {x0}, v{GZ}")
    a(f"v_cvt_pk_bf16_f32 {x0}, {x0}, {x0}")
    a(f"s_mov_b64 exec, 0xffff")
    a(f"global_store_short {vOUT}, {x0}, {sp(pOUT)}")
    if stamps:
        a.label("L_stamps")
        stamp("end")
        a.lgkm(0)
        a(f"s_mov_b64 exec, 1")
        a(f"s_mul_i32 {sT0}, s2, {8*len(STAMPS)}")
        a(f"s_add_u32 {sT0}, {sT0}, 0x8000000")
        a(f"v_mov_b32 {vA}, {sT0}")
        for i, (lo, hi) in enumerate(STAMPS):
            a(f"v_mov_b32 v{D0+2*i}, s{lo}")
            a(f"v_mov_b32 v{D0+2*i+1}, s{hi}")
        for i in range(len(STAMPS)):
            a(f"global_store_dwordx2 {vA}, {vq(D0+2*i, 2)}, {sp(pWS)} offset:{8*i}")
    a(f"s_cmp_lg_u32 s2, 0")
    a(f"s_cbranch_scc1 L_end")
    a(f"s_mov_b64 exec, 1")
    a(f"v_mov_b32 {vA}, 0")
    a(f"global_store_dword {vA}, {vTAG}, {sp(pWS)}")
    a.label("L_end")
    a("s_endpgm")
    assert a.fi == len(a.fq)
    a.raw('.section .rodata,"a"')
    a.raw(".p2align 6")
    a.raw(f".amdhsa_kernel {NAME}_kernel")
    a.raw("  .amdhsa_next_free_vgpr 512")
    a.raw("  .amdhsa_next_free_sgpr 102")
    a.raw("  .amdhsa_accum_offset 256")
    a.raw("  .amdhsa_group_segment_fixed_size 0")
    a.raw("  .amdhsa_kernarg_size 104")
    a.raw("  .amdhsa_user_sgpr_count 2")
    a.raw("  .amdhsa_user_sgpr_kernarg_segment_ptr 1")
    a.raw("  .amdhsa_system_sgpr_workgroup_id_x 1")
    a.raw("  .amdhsa_float_denorm_mode_32 3")
    a.raw(".end_amdhsa_kernel")
    return a.text()


if __name__ == "__main__":
    import argparse, json
    ap = argparse.ArgumentParser()
    ap.add_argument("-o", default="cdna_kernels/" + NAME + ".s")
    ap.add_argument("--stamps", default="")
    ap.add_argument("--kw", default="{}", help="json dict of gen() keyword arguments")
    x = ap.parse_args()
    kw = json.loads(x.kw)
    open(x.o, "w").write(gen(stamps=x.stamps.split(",") if x.stamps else None, **kw))
```
